```python
import torch

def _softmax(x, axis=-1):
    return torch.softmax(x, dim=axis)
def _gelu(x):
    return torch.nn.functional.gelu(x, approximate="tanh")
def _silu(x):
    return torch.nn.functional.silu(x)
def _sigmoid(x):
    return torch.sigmoid(x)
def _layernorm(x, axis=-1, eps=1e-5):
    m = x.mean(dim=axis, keepdim=True)
    v = x.var(dim=axis, keepdim=True, unbiased=False)
    return (x - m) / torch.sqrt(v + eps)
def _scatter_add(tgt, idx, src, axis=0):
    return tgt.clone().index_add_(axis, idx, src)
def _segment_sum(src, seg, n):
    out = torch.zeros((n,) + src.shape[1:], dtype=src.dtype)
    return out.index_add_(0, seg, src)
def _pad(x, pw):
    flat = tuple(v for pair in reversed(pw) for v in pair)
    return torch.nn.functional.pad(x, flat)

kernel_name = 'recurrent_scan__spectral_fnet__glu_gated_geglu__prompt'

def setup_inputs():

    _w = (lambda a: (lambda t: t.to(torch.bfloat16) if t.is_floating_point() else t)(torch.as_tensor(a)))
    def _A_setup():
        B, S, D = 1, 2048, 640
        ns = torch.arange(S)[:, None] * torch.arange(S)[None, :]
        nd = torch.arange(D)[:, None] * torch.arange(D)[None, :]
        Ws_re = torch.cos(-2.0 * torch.pi * ns / S).to(float)
        Ws_im = torch.sin(-2.0 * torch.pi * ns / S).to(float)
        Wd_re = torch.cos(-2.0 * torch.pi * nd / D).to(float)
        Wd_im = torch.sin(-2.0 * torch.pi * nd / D).to(float)
        return {
            "x": _w((lambda *s: torch.randn(*s, dtype=torch.bfloat16) * 0.05)(B, S, D)),
            "dft_seq_re": _w(Ws_re),
            "dft_seq_im": _w(Ws_im),
            "dft_hid_re": _w(Wd_re),
            "dft_hid_im": _w(Wd_im),
        }
    _A_in = _A_setup()

    def _B_setup():
        B, S, Dm, Df = 1, 2048, 640, 1536
        return {
            "x": _w((lambda *s: torch.randn(*s, dtype=torch.bfloat16) * 0.05)(B, S, Dm)),
            "w_gate": _w((lambda *s: torch.randn(*s, dtype=torch.bfloat16) * 0.05)(Dm, Df) * (Dm ** -0.5)),
            "w_up": _w((lambda *s: torch.randn(*s, dtype=torch.bfloat16) * 0.05)(Dm, Df) * (Dm ** -0.5)),
            "w_down": _w((lambda *s: torch.randn(*s, dtype=torch.bfloat16) * 0.05)(Df, Dm) * (Df ** -0.5)),
        }
    _B_in = _B_setup()

    return {
        "A_x": _A_in["x"],
        "A_dft_seq_re": _A_in["dft_seq_re"],
        "A_dft_seq_im": _A_in["dft_seq_im"],
        "A_dft_hid_re": _A_in["dft_hid_re"],
        "A_dft_hid_im": _A_in["dft_hid_im"],
        "B_x": _B_in["x"],
        "B_w_gate": _B_in["w_gate"],
        "B_w_up": _B_in["w_up"],
        "B_w_down": _B_in["w_down"],
    }

def reference(A_x, A_dft_seq_re, A_dft_seq_im, A_dft_hid_re, A_dft_hid_im, B_x, B_w_gate, B_w_up, B_w_down):
    def _A_ref(x, dft_seq_re, dft_seq_im, dft_hid_re, dft_hid_im):
        a = torch.einsum("bsd,ed->bse", x, dft_hid_re)
        b = torch.einsum("bsd,ed->bse", x, dft_hid_im)
        y = torch.einsum("ts,bse->bte", dft_seq_re, a) - torch.einsum("ts,bse->bte", dft_seq_im, b)
        return y

    def _B_ref(x, w_gate, w_up, w_down):
        g = torch.einsum("bsd,df->bsf", x, w_gate)
        u = torch.einsum("bsd,df->bsf", x, w_up)
        h = _gelu(g) * u
        return torch.einsum("bsf,fd->bsd", h, w_down)

    x = A_x
    xn = _layernorm(x, axis=-1)
    s = _A_ref(xn, A_dft_seq_re, A_dft_seq_im, A_dft_hid_re, A_dft_hid_im)
    g = _silu(_B_ref(xn, B_w_gate, B_w_up, B_w_down))
    return x + s * g
```

```python
class Asm:
    def __init__(self):
        self.lines = []
        self._lab = 0
        self.lq = []
        self.vq = []

    def __call__(self, s):
        for ln in s.strip("\n").split("\n"):
            self.lines.append("    " + ln.strip())

    def raw(self, s):
        self.lines.append(s)

    def label(self, name):
        self.lines.append(name + ":")

    def newlabel(self, base="L"):
        self._lab += 1
        return f".{base}_{self._lab}"

    def comment(self, s):
        self.lines.append("    ; " + s)

    def lds(self, s, tag):
        self(s)
        self.lq.append(tag)

    def lwait(self, *tags):
        idx = -1
        for i, t in enumerate(self.lq):
            if t in tags:
                idx = i
        if idx < 0:
            return
        n = len(self.lq) - 1 - idx
        n = min(n, 15)
        self(f"s_waitcnt lgkmcnt({n})")
        self.lq = self.lq[len(self.lq) - n:] if n else []

    def lwait_all(self):
        self("s_waitcnt lgkmcnt(0)")
        self.lq = []

    def vm(self, s, tag):
        self(s)
        self.vq.append(tag)

    def vwait(self, *tags):
        idx = -1
        for i, t in enumerate(self.vq):
            if t in tags:
                idx = i
        if idx < 0:
            return
        n = len(self.vq) - 1 - idx
        n = min(n, 63)
        self(f"s_waitcnt vmcnt({n})")
        self.vq = self.vq[len(self.vq) - n:] if n else []

    def vwait_all(self):
        self("s_waitcnt vmcnt(0)")
        self.vq = []

    def text(self):
        return "\n".join(self.lines) + "\n"


def vr(b, n=1):
    return f"v{b}" if n == 1 else f"v[{b}:{b+n-1}]"


def ar(b, n=1):
    return f"a{b}" if n == 1 else f"a[{b}:{b+n-1}]"


def sr(b, n=1):
    return f"s{b}" if n == 1 else f"s[{b}:{b+n-1}]"


def kernel_header(name):
    return f""".text
.globl {name}
.p2align 8
.type {name},@function
{name}:
"""


def kernel_desc(name, nvgpr, accum_offset, nsgpr=102):
    return f""".p2align 6
.amdhsa_kernel {name}
  .amdhsa_next_free_vgpr {nvgpr}
  .amdhsa_next_free_sgpr {nsgpr}
  .amdhsa_accum_offset {accum_offset}
  .amdhsa_group_segment_fixed_size 0
  .amdhsa_kernarg_size 96
  .amdhsa_user_sgpr_count 2
  .amdhsa_user_sgpr_kernarg_segment_ptr 1
  .amdhsa_system_sgpr_workgroup_id_x 1
  .amdhsa_float_denorm_mode_32 3
.end_amdhsa_kernel
"""
```

```python
from asmlib import *
import struct

XN_OFF = 0
H_OFF = 4 << 20
PQG_OFF = 12 << 20
STAMP_OFF = 32 << 20

def f32(x):
    return "0x%08x" % struct.unpack("<I", struct.pack("<f", x))[0]

LOG2E = 1.4426950408889634


def srd(a, s, base_lo, base_hi, nrec):
    if base_lo != f"s{s}":
        a(f"s_mov_b32 s{s}, {base_lo}")
    a(f"s_and_b32 s{s+1}, {base_hi}, 0xffff")
    a(f"s_mov_b32 s{s+2}, {nrec}")
    a(f"s_mov_b32 s{s+3}, 0x20000")


def add64(a, dlo, dhi, lo, hi, off):
    a(f"s_add_u32 {dlo}, {lo}, {off}")
    a(f"s_addc_u32 {dhi}, {hi}, 0")


def stamp(a, opt, kidx, slot, wave_sgpr=None):
    if not opt.get("stamps"):
        return
    a(f"s_load_dwordx2 s[92:93], s[0:1], 88")
    a("s_memrealtime s[90:91]")
    a("s_waitcnt lgkmcnt(0)")
    a.lq = []
    a(f"s_add_u32 s92, s92, {STAMP_OFF}")
    a("s_addc_u32 s93, s93, 0")
    a("s_and_b32 s93, s93, 0xffff")
    a("s_mov_b32 s94, 0x1000000")
    a("s_mov_b32 s95, 0x20000")
    a(f"s_add_u32 s96, s2, {kidx*512}")
    a("s_lshl_b32 s96, s96, 8")
    a(f"s_add_u32 s96, s96, {slot*8}")
    a("v_mov_b32 v250, s90")
    a("v_mov_b32 v251, s91")
    a("v_lshrrev_b32 v252, 6, v0")
    a("v_lshlrev_b32 v252, 5, v252")
    a("s_nop 4")
    a.vm("buffer_store_dwordx2 v[250:251], v252, s[92:95], s96 offen", "stamp")


def rn_bf16(a, v):
    a(f"v_cvt_pk_bf16_f32 {v}, {v}, {v}")
    a(f"v_and_b32 {v}, 0xffff0000, {v}")


def half_sum(a, v, t):
    a("s_nop 1")
    a(f"v_add_f32_dpp {v}, {v}, {v} quad_perm:[1,0,3,2] row_mask:0xf bank_mask:0xf")
    a("s_nop 1")
    a(f"v_add_f32_dpp {v}, {v}, {v} quad_perm:[2,3,0,1] row_mask:0xf bank_mask:0xf")
    a("s_nop 1")
    a(f"v_add_f32_dpp {v}, {v}, {v} row_half_mirror row_mask:0xf bank_mask:0xf")
    a("s_nop 1")
    a(f"v_add_f32_dpp {v}, {v}, {v} row_mirror row_mask:0xf bank_mask:0xf")
    a(f"v_mov_b32 {t}, {v}")
    a("s_nop 1")
    a(f"v_permlane16_swap_b32 {v}, {t}")
    a("s_nop 1")
    a(f"v_add_f32 {v}, {v}, {t}")


def gen_ln(opt):
    a = Asm()
    name = "ln_kernel"
    a.raw(kernel_header(name))
    a("s_cmp_ge_u32 s2, 256")
    a("s_cbranch_scc1 .ln_done")
    a("s_load_dwordx2 s[4:5], s[0:1], 0")
    a("s_load_dwordx2 s[8:9], s[0:1], 88")
    stamp(a, opt, 0, 0)
    a("v_lshrrev_b32 v1, 5, v0")
    a("v_and_b32 v2, 31, v0")
    a("s_lshl_b32 s3, s2, 3")
    a("v_add_u32 v1, s3, v1")
    a("v_mul_u32_u24 v1, 1280, v1")
    a("v_lshl_add_u32 v1, v2, 3, v1")
    a("s_waitcnt lgkmcnt(0)")
    srd(a, 4, "s4", "s5", 2048 * 1280)
    srd(a, 8, "s8", "s9", 2048 * 1280)
    for i in range(5):
        a(f"buffer_load_dwordx2 v[{4+2*i}:{5+2*i}], v1, s[4:7], 0 offen offset:{256*i}")
    a("s_waitcnt vmcnt(0)")
    for i in range(10):
        a(f"v_lshlrev_b32 v{20+2*i}, 16, v{4+i}")
        a(f"v_and_b32 v{21+2*i}, 0xffff0000, v{4+i}")
    a("v_add_f32 v2, v20, v21")
    for i in range(2, 20):
        a(f"v_add_f32 v2, v2, v{20+i}")
    half_sum(a, "v2", "v3")
    a(f"v_mul_f32 v2, {f32(1.0/640)}, v2")
    a("v_sub_f32 v40, v20, v2")
    a("v_mul_f32 v41, v40, v40")
    for i in range(1, 20):
        a(f"v_sub_f32 v40, v{20+i}, v2")
        a("v_fmac_f32 v41, v40, v40")
    half_sum(a, "v41", "v3")
    a(f"v_mul_f32 v41, {f32(1.0/640)}, v41")
    rn_bf16(a, "v2")
    rn_bf16(a, "v41")
    a(f"v_add_f32 v41, {f32(1e-5)}, v41")
    rn_bf16(a, "v41")
    a("v_sqrt_f32 v41, v41")
    a("s_nop 0")
    rn_bf16(a, "v41")
    a("v_rcp_f32 v42, v41")
    a("s_nop 0")
    a("v_fma_f32 v43, -v41, v42, 1.0")
    a("v_fma_f32 v42, v43, v42, v42")
    for i in range(10):
        lo, hi = 20 + 2 * i, 21 + 2 * i
        a(f"v_sub_f32 v{lo}, v{lo}, v2")
        a(f"v_sub_f32 v{hi}, v{hi}, v2")
        a(f"v_cvt_pk_bf16_f32 v{4+i}, v{lo}, v{hi}")
        a(f"v_lshlrev_b32 v{lo}, 16, v{4+i}")
        a(f"v_and_b32 v{hi}, 0xffff0000, v{4+i}")
        a(f"v_mul_f32 v{lo}, v{lo}, v42")
        a(f"v_mul_f32 v{hi}, v{hi}, v42")
        a(f"v_cvt_pk_bf16_f32 v{4+i}, v{lo}, v{hi}")
    for i in range(5):
        a(f"buffer_store_dwordx2 v[{4+2*i}:{5+2*i}], v1, s[8:11], 0 offen offset:{256*i}")
    stamp(a, opt, 0, 1)
    a.label(".ln_done")
    a("s_endpgm")
    nv = 256 if opt.get("stamps") else 48
    return name, a.text(), kernel_desc(name, nv, nv), f"; @launch kernel={name} grid=(256,1,1) block=(256,1,1) lds=0"


class Core:
    def __init__(self, a, NA, SS, S, a_imm, pfx):
        self.a, self.NA, self.NB, self.SS, self.S, self.a_imm, self.pfx = a, NA, 2, SS, S, a_imm, pfx
        self.baseA = [2 + i for i in range(NA)]
        self.baseB = [6 + i for i in range(4)]
        fr = 12
        self.fA = [[fr + st * (NA + 2) * 4 + m * 4 for m in range(NA)] for st in range(2)]
        self.fB = [[fr + st * (NA + 2) * 4 + NA * 4 + b * 4 for b in range(2)] for st in range(2)]
        self.acc0 = fr + 2 * (NA + 2) * 4
        self.acc0 = (self.acc0 + 3) // 4 * 4
        self.nv = self.acc0 + NA * 2 * 16

    def acc(self, m, b):
        return self.acc0 + (m * 2 + b) * 16

    def reads(self, st, s):
        r = []

        def ra(m):
            for q in range(2):
                r.append((f"ds_read_b64_tr_b16 {vr(self.fA[st][m]+2*q,2)}, v{self.baseA[m]} offset:{self.a_imm(s,q)}", ("A", st, m)))

        def rb(b):
            r.append((f"ds_read_b128 {vr(self.fB[st][b],4)}, v{self.baseB[s]} offset:{b*4096}", ("B", st, b)))
        ra(0); rb(0); rb(1)
        for m in range(1, self.NA):
            ra(m)
        return r

    def step(self, st, nxt_reads, fillers, barrier_after_first=False):
        a = self.a
        order = [(m, b) for m in range(self.NA) for b in range(2)]
        rd = list(nxt_reads)
        fl = list(fillers)
        for i, (m, b) in enumerate(order):
            a.lwait(("A", st, m), ("B", st, b))
            c = vr(self.acc(m, b), 16)
            a(f"v_mfma_f32_32x32x16_bf16 {c}, {vr(self.fA[st][m],4)}, {vr(self.fB[st][b],4)}, {c}")
            if i == 0 and barrier_after_first:
                a.lwait_all()
                a("s_barrier")
            for _ in range(3):
                if rd:
                    t, tag = rd.pop(0)
                    a.lds(t, tag)
            if not rd:
                for _ in range(3):
                    if fl:
                        a(fl.pop(0))
        assert not rd
        for f in fl:
            a(f)

    def mainloop(self, s_n, s_slot, s_delta):
        a = self.a
        for i in range(self.NA * 2 * 16):
            a(f"v_mov_b32 v{self.acc0+i}, 0")
        a(f"s_mov_b32 {s_slot}, 0")
        a(f"s_mov_b32 s60, {self.SS}")
        a(f"s_sub_u32 {s_n}, {s_n}, 1")
        a("s_barrier")
        for t, tag in self.reads(0, 0):
            a.lds(t, tag)
        loop = f".{self.pfx}_cloop"
        a.label(loop)
        upd = lambda r: f"v_add_u32 v{r}, {s_delta}, v{r}"
        sal = [f"s_add_u32 {s_slot}, {s_slot}, 1",
               f"s_cmp_eq_u32 {s_slot}, {self.S}",
               f"s_cselect_b32 {s_delta}, {(-(self.S-1)*self.SS) & 0xffffffff}, s60",
               f"s_cselect_b32 {s_slot}, 0, {s_slot}",
               f"s_sub_u32 {s_n}, {s_n}, 1"]
        self.step(0, self.reads(1, 1), sal)
        self.step(1, self.reads(0, 2), [upd(self.baseB[0]), upd(self.baseB[1])])
        self.step(0, self.reads(1, 3), [upd(self.baseB[2])] + [upd(r) for r in self.baseA])
        self.step(1, self.reads(0, 0), [upd(self.baseB[3]), f"s_cmp_lg_u32 {s_n}, 0"], barrier_after_first=True)
        a(f"s_cbranch_scc1 {loop}")
        self.step(0, self.reads(1, 1), [])
        self.step(1, self.reads(0, 2), [])
        self.step(0, self.reads(1, 3), [])
        self.step(1, [], [])


def loader_loop(a, pfx, instrs, SS, S, s_n, soffs, s_slot):
    ni = len(instrs)

    def issue():
        for (sd, vo, lo, so) in instrs:
            a(f"s_add_u32 m0, {s_slot}, {lo}")
            a("s_nop 0")
            a(f"buffer_load_dwordx4 v{vo}, {sr(sd,4)}, {so} offen lds")
        for (sg, st) in soffs:
            a(f"s_add_u32 {sg}, {sg}, {st}")
        a(f"s_add_u32 {s_slot}, {s_slot}, {SS}")
        a(f"s_cmp_ge_u32 {s_slot}, {S*SS}")
        a(f"s_cselect_b32 s40, {S*SS}, 0")
        a(f"s_sub_u32 {s_slot}, {s_slot}, s40")
    for _ in range(S - 1):
        issue()
    a(f"s_sub_u32 {s_n}, {s_n}, {S-1}")
    loop = f".{pfx}_lloop"
    a.label(loop)
    a(f"s_waitcnt vmcnt({ni*(S-2)})")
    a("s_barrier")
    issue()
    a(f"s_sub_u32 {s_n}, {s_n}, 1")
    a(f"s_cmp_lg_u32 {s_n}, 0")
    a(f"s_cbranch_scc1 {loop}")
    for k in range(S - 2, -1, -1):
        a(f"s_waitcnt vmcnt({ni*k})")
        a("s_barrier")


def kcontig_voffs(a, regs, pitch_sgpr_or_int, wave_sgpr, t0, t1):
    a(f"v_lshrrev_b32 {t0}, 3, v1")
    a(f"s_lshl_b32 s41, {wave_sgpr}, 5")
    a(f"v_add_u32 {t0}, s41, {t0}")
    a(f"s_mov_b32 s41, {pitch_sgpr_or_int}")
    a(f"v_mul_lo_u32 {t0}, {t0}, s41")
    a(f"v_lshrrev_b32 {t1}, 4, v1")
    a(f"v_xor_b32 {t1}, {t1}, v1")
    a(f"v_and_b32 {t1}, 7, {t1}")
    a(f"s_lshl_b32 s41, s41, 3")
    for j in range(4):
        r = regs[j]
        if j % 2 == 0:
            a(f"v_lshl_add_u32 v{r}, {t1}, 4, {t0}")
        else:
            a(f"v_xor_b32 v{r}, 4, {t1}")
            a(f"v_lshl_add_u32 v{r}, v{r}, 4, {t0}")
        if j < 3:
            a(f"v_add_u32 {t0}, s41, {t0}")


def kcontig_bases(a, core, wt_sgpr, t0, t1):
    a(f"v_and_b32 {t0}, 31, v1")
    a(f"s_lshl_b32 s41, {wt_sgpr}, 6")
    a(f"v_add_u32 {t0}, s41, {t0}")
    a(f"v_lshlrev_b32 {t0}, 7, {t0}")
    a(f"v_lshrrev_b32 {t1}, 1, v1")
    a(f"v_and_b32 {t1}, 7, {t1}")
    a(f"v_lshrrev_b32 v{core.baseB[0]}, 5, v1")
    a(f"v_xor_b32 {t1}, {t1}, v{core.baseB[0]}")
    for s in range(4):
        r = core.baseB[s]
        a(f"v_xor_b32 v{r}, {2*s}, {t1}")
        a(f"v_lshl_add_u32 v{r}, v{r}, 4, {t0}")


def pack_store_prep(a, base):
    for k in range(4):
        a(f"v_cvt_pk_bf16_f32 v{base+k}, v{base+2*k}, v{base+2*k+1}")


def gen_k1(opt):
    a = Asm()
    name = "k1_kernel"
    S = opt.get("k1_slots", 5)
    SS = 32768
    a.raw(kernel_header(name))
    a("s_cmp_ge_u32 s2, 256")
    a("s_cbranch_scc1 .k1_done")
    a("s_load_dwordx4 s[4:7], s[0:1], 8")
    a("s_load_dwordx2 s[24:25], s[0:1], 64")
    a("s_load_dwordx2 s[26:27], s[0:1], 88")
    a("v_and_b32 v1, 63, v0")
    a("v_lshrrev_b32 v2, 6, v0")
    if opt.get("k1_map", "xcd53") == "xcd53":
        a("s_and_b32 s30, s2, 7")
        a("s_lshr_b32 s31, s2, 3")
        a("s_cmp_lt_u32 s30, 5")
        a("s_cbranch_scc0 .k1_map_o")
        a("s_lshl_b32 s32, s30, 5")
        a("s_add_u32 s32, s32, s31")
        a("s_branch .k1_map_done")
        a.label(".k1_map_o")
        a("s_cmp_ge_u32 s31, 27")
        a("s_cbranch_scc1 .k1_done")
        a("s_sub_u32 s30, s30, 5")
        a("s_mul_i32 s32, s30, 27")
        a("s_add_u32 s32, s32, s31")
        a("s_add_u32 s32, s32, 160")
        a.label(".k1_map_done")
    elif opt.get("k1_map") == "even":
        a("s_and_b32 s30, s2, 7")
        a("s_lshr_b32 s31, s2, 3")
        a("s_cmp_lt_u32 s31, 20")
        a("s_cbranch_scc0 .k1_map_o")
        a("s_mul_i32 s32, s30, 20")
        a("s_add_u32 s32, s32, s31")
        a("s_branch .k1_map_done")
        a.label(".k1_map_o")
        a("s_cmp_ge_u32 s31, 30")
        a("s_cbranch_scc1 .k1_done")
        a("s_mul_i32 s32, s30, 10")
        a("s_add_u32 s32, s32, s31")
        a("s_add_u32 s32, s32, 140")
        a.label(".k1_map_done")
    else:
        a("s_mov_b32 s32, s2")
    a("s_cmp_ge_u32 s32, 240")
    a("s_cbranch_scc1 .k1_done")
    stamp(a, opt, 2, 0)
    a("v_readfirstlane_b32 s33, v2")
    a(f"s_mul_hi_u32 s34, s32, {(2**32 + 4)//5}")
    a("s_mul_i32 s35, s34, 5")
    a("s_sub_u32 s35, s32, s35")
    a("s_lshr_b32 s36, s34, 4")
    a("s_and_b32 s34, s34, 15")
    a("s_waitcnt lgkmcnt(0)")
    a("s_cmp_eq_u32 s36, 2")
    a("s_cbranch_scc1 .k1_set_o")
    a("s_cmp_eq_u32 s36, 0")
    a("s_cselect_b32 s8, s4, s6")
    a("s_cselect_b32 s9, s5, s7")
    a("s_lshl_b32 s37, s34, 19")
    add64(a, "s8", "s9", "s8", "s9", "s37")
    a("s_mov_b32 s10, 0x80000")
    add64(a, "s12", "s13", "s26", "s27", XN_OFF)
    a(f"s_mov_b32 s14, {2048*1280}")
    a("s_mov_b32 s16, 128")
    a("s_mov_b32 s18, 32")
    a("s_branch .k1_set_done")
    a.label(".k1_set_o")
    a(f"s_mul_i32 s37, s34, {24*16384}")
    a(f"s_add_u32 s37, s37, {H_OFF}")
    add64(a, "s8", "s9", "s26", "s27", "s37")
    a(f"s_mov_b32 s10, {24*16384}")
    a("s_mov_b32 s12, s24")
    a("s_mov_b32 s13, s25")
    a(f"s_mov_b32 s14, {1536*1280}")
    a("s_mov_b32 s16, 16384")
    a("s_mov_b32 s18, 24")
    a.label(".k1_set_done")
    a("s_and_b32 s9, s9, 0xffff")
    a("s_mov_b32 s11, 0x20000")
    a("s_lshl_b32 s37, s35, 8")
    add64(a, "s12", "s13", "s12", "s13", "s37")
    a("s_sub_u32 s14, s14, s37")
    a("s_and_b32 s13, s13, 0xffff")
    a("s_mov_b32 s15, 0x20000")
    a("s_cmp_ge_u32 s33, 4")
    a("s_cbranch_scc1 .k1_loader")

    core = Core(a, 2, SS, S, lambda s, q: 16384 + (16 * s + 4 * q) * 256, "k1")
    a("s_and_b32 s38, s33, 1")
    a("s_lshr_b32 s39, s33, 1")
    a("s_cmp_eq_u32 s36, 2")
    a("s_cbranch_scc1 .k1_cb_o")
    kcontig_bases(a, core, "s38", "v10", "v11")
    a("s_branch .k1_cb_done")
    a.label(".k1_cb_o")
    a("s_lshl_b32 s41, s38, 13")
    a("v_lshl_add_u32 v10, v1, 4, s41")
    for s in range(4):
        a(f"v_add_u32 v{core.baseB[s]}, {s*1024}, v10")
    a.label(".k1_cb_done")
    a("v_lshrrev_b32 v10, 5, v1")
    a("v_lshlrev_b32 v10, 11, v10")
    a("v_bfe_u32 v11, v1, 2, 2")
    a("v_lshl_add_u32 v10, v11, 8, v10")
    a(f"v_bfe_u32 v{core.baseA[0]}, v1, 4, 1")
    a(f"v_lshl_add_u32 v10, v{core.baseA[0]}, 5, v10")
    a(f"v_and_b32 v{core.baseA[0]}, 3, v1")
    a(f"v_lshl_add_u32 v10, v{core.baseA[0]}, 3, v10")
    a("s_lshl_b32 s41, s39, 1")
    for b in range(2):
        a(f"v_xor_b32 v{core.baseA[b]}, s41, v11")
        a(f"v_lshl_add_u32 v{core.baseA[b]}, v{core.baseA[b]}, 6, v10")
        a("s_add_u32 s41, s41, 1")
    core.mainloop("s18", "s42", "s43")
    stamp(a, opt, 2, 1)
    a("s_lshl_b32 s41, s34, 3")
    a("s_lshl_b32 s44, s38, 2")
    a("s_add_u32 s41, s41, s44")
    a("s_mul_i32 s41, s41, 60")
    a("s_mul_i32 s44, s36, 20")
    a("s_add_u32 s41, s41, s44")
    a("s_lshl_b32 s44, s35, 2")
    a("s_add_u32 s41, s41, s44")
    a("s_lshl_b32 s44, s39, 1")
    a("s_add_u32 s41, s41, s44")
    a("s_lshl_b32 s41, s41, 10")
    a(f"s_add_u32 s41, s41, {PQG_OFF}")
    add64(a, "s20", "s21", "s26", "s27", "s41")
    srd(a, 20, "s20", "s21", 4 * 61440)
    a("s_mov_b32 s45, 122880")
    a("v_bfe_u32 v2, v1, 4, 1")
    a("v_mul_u32_u24 v2, 61440, v2")
    a("v_lshrrev_b32 v3, 5, v1")
    a("v_lshl_add_u32 v2, v3, 8, v2")
    a("v_and_b32 v3, 15, v1")
    a("v_lshl_add_u32 v2, v3, 4, v2")
    a("s_nop 7")
    a("s_cmp_lg_u32 s36, 2")
    a("s_cbranch_scc1 .k1_pack")
    for i in range(0, 64, 2):
        r0, r1 = core.acc0 + i, core.acc0 + i + 1
        a(f"v_cvt_pk_bf16_f32 v4, v{r0}, v{r1}")
        a(f"v_lshlrev_b32 v{r0}, 16, v4")
        a(f"v_and_b32 v{r1}, 0xffff0000, v4")
        a(f"v_mul_f32 v5, {f32(-LOG2E)}, v{r0}")
        a(f"v_mul_f32 v6, {f32(-LOG2E)}, v{r1}")
        a("v_exp_f32 v5, v5")
        a("v_exp_f32 v6, v6")
        a("s_nop 0")
        a("v_add_f32 v5, 1.0, v5")
        a("v_add_f32 v6, 1.0, v6")
        a("v_rcp_f32 v5, v5")
        a("v_rcp_f32 v6, v6")
        a("s_nop 0")
        a(f"v_mul_f32 v{r0}, v{r0}, v5")
        a(f"v_mul_f32 v{r1}, v{r1}, v6")
    a.label(".k1_pack")
    for m in range(2):
        for b in range(2):
            for u in range(2):
                pack_store_prep(a, core.acc(m, b) + 8 * u)
    a("s_nop 1")
    for m in range(2):
        for b in range(2):
            for u in range(2):
                r = core.acc(m, b) + 8 * u
                a(f"v_permlane32_swap_b32 v{r}, v{r+2}")
                a(f"v_permlane32_swap_b32 v{r+1}, v{r+3}")
    a("s_nop 1")
    for m in range(2):
        for b in range(2):
            for u in range(2):
                r = core.acc(m, b) + 8 * u
                so = "s45" if b else "0"
                a(f"buffer_store_dwordx4 {vr(r,4)}, v2, s[20:23], {so} offen offset:{m*1024+u*512}")
    stamp(a, opt, 2, 2)
    a("s_endpgm")

    a.label(".k1_loader")
    a("s_sub_u32 s33, s33, 4")
    a("s_cmp_eq_u32 s36, 2")
    a("s_cbranch_scc1 .k1_lv_o")
    kcontig_voffs(a, [2, 3, 4, 5], 4096, "s33", "v10", "v11")
    a("s_branch .k1_lv_done")
    a.label(".k1_lv_o")
    a("s_lshl_b32 s41, s33, 12")
    a("v_lshl_add_u32 v2, v1, 4, s41")
    for j in range(1, 4):
        a(f"v_add_u32 v{2+j}, {1024*j}, v2")
    a.label(".k1_lv_done")
    a("v_lshrrev_b32 v10, 4, v1")
    a("v_lshlrev_b32 v11, 2, v10")
    a("v_xor_b32 v11, v11, v1")
    a("v_and_b32 v11, 15, v11")
    a("s_lshl_b32 s41, s33, 4")
    a("v_add_u32 v10, s41, v10")
    a("v_mul_u32_u24 v10, 1280, v10")
    a("v_lshl_add_u32 v6, v11, 4, v10")
    for j in range(1, 4):
        a(f"v_add_u32 v{6+j}, {5120*j}, v6")
    a("s_mov_b32 s44, 0")
    a("s_mov_b32 s45, 0")
    a("s_lshl_b32 s46, s33, 12")
    instrs = []
    for j in range(4):
        instrs.append((8, 2 + j, j * 1024, "s44"))
        instrs.append((12, 6 + j, 16384 + j * 1024, "s45"))
    loader_loop(a, "k1", instrs, SS, S, "s18", [("s44", "s16"), ("s45", 64 * 1280)], "s46")
    a.label(".k1_done")
    a("s_endpgm")
    nv = 256 if opt.get("stamps") else (core.nv + 7) // 8 * 8
    return name, a.text(), kernel_desc(name, nv, nv), f"; @launch kernel={name} grid=(256,1,1) block=(512,1,1) lds={S*SS}"


def gen_k0(opt):
    a = Asm()
    name = "k0_kernel"
    S = 4
    SS = 40960
    GOFF, UOFF = 16384, 28672
    a.raw(kernel_header(name))
    a("s_cmp_ge_u32 s2, 256")
    a("s_cbranch_scc1 .k0_done")
    a("s_load_dwordx4 s[4:7], s[0:1], 48")
    a("s_load_dwordx2 s[26:27], s[0:1], 88")
    stamp(a, opt, 1, 0)
    a("v_and_b32 v1, 63, v0")
    a("v_lshrrev_b32 v2, 6, v0")
    a("s_and_b32 s30, s2, 7")
    a("s_lshr_b32 s31, s2, 3")
    a("s_lshr_b32 s34, s30, 1")
    a("s_lshl_b32 s34, s34, 2")
    a("s_and_b32 s35, s31, 3")
    a("s_add_u32 s34, s34, s35")
    a("s_and_b32 s35, s30, 1")
    a("s_lshl_b32 s35, s35, 3")
    a("s_lshr_b32 s31, s31, 2")
    a("s_add_u32 s35, s35, s31")
    a("v_readfirstlane_b32 s33, v2")
    a("s_mov_b32 s18, 10")
    a("s_waitcnt lgkmcnt(0)")
    a("s_cmp_ge_u32 s33, 4")
    a("s_cbranch_scc1 .k0_loader")

    core = Core(a, 3, SS, S, lambda s, q: (16 * s + 4 * q) * 192, "k0")
    a("s_and_b32 s38, s33, 1")
    a("s_lshr_b32 s39, s33, 1")
    kcontig_bases(a, core, "s38", "v10", "v11")
    a("v_lshrrev_b32 v10, 5, v1")
    a("v_lshlrev_b32 v10, 3, v10")
    a("v_bfe_u32 v11, v1, 2, 2")
    a("v_add_u32 v10, v10, v11")
    a("v_mul_u32_u24 v10, 192, v10")
    a("v_and_b32 v11, 3, v1")
    a("v_lshl_add_u32 v10, v11, 3, v10")
    a("v_bfe_u32 v11, v1, 4, 1")
    a(f"v_mul_u32_u24 v{core.baseA[0]}, {UOFF-GOFF}, v11")
    a(f"v_add3_u32 v10, v10, v{core.baseA[0]}, 0")
    a(f"v_add_u32 v10, {GOFF}, v10")
    a("s_mul_i32 s41, s39, 3")
    for mm in range(3):
        a(f"v_xor_b32 v{core.baseA[mm]}, s41, v11")
        a(f"v_lshl_add_u32 v{core.baseA[mm]}, v{core.baseA[mm]}, 5, v10")
        a("s_add_u32 s41, s41, 1")
    core.mainloop("s18", "s42", "s43")
    stamp(a, opt, 1, 1)
    a(f"s_mul_i32 s41, s34, {24*16384}")
    a("s_lshl_b32 s44, s38, 13")
    a("s_add_u32 s41, s41, s44")
    a(f"s_add_u32 s41, s41, {H_OFF}")
    add64(a, "s20", "s21", "s26", "s27", "s41")
    srd(a, 20, "s20", "s21", 24 * 16384)
    a("s_mul_i32 s41, s35, 6")
    a("s_mul_i32 s44, s39, 3")
    a("s_add_u32 s41, s41, s44")
    for mm in range(3):
        a(f"s_lshr_b32 s{46+mm}, s41, 2")
        a(f"s_lshl_b32 s{46+mm}, s{46+mm}, 14")
        a("s_and_b32 s44, s41, 3")
        a("s_lshl_b32 s44, s44, 10")
        a(f"s_add_u32 s{46+mm}, s{46+mm}, s44")
        a("s_add_u32 s41, s41, 1")
    a("v_lshlrev_b32 v2, 4, v1")
    a("v_add_u32 v3, 4096, v2")
    a("s_nop 7")
    c1 = -2.0 * 0.7978845608028654 * LOG2E
    c2 = c1 * 0.044715
    a(f"s_mov_b32 s50, {f32(c1)}")
    a(f"s_mov_b32 s51, {f32(c2)}")
    a("v_mov_b32 v4, s50")
    for m in range(3):
        for b in range(2):
            base = core.acc(m, b)
            for i in range(0, 8, 2):
                g0, g1, u0, u1 = base + i, base + i + 1, base + 8 + i, base + 9 + i
                a(f"v_cvt_pk_bf16_f32 v5, v{g0}, v{g1}")
                a(f"v_cvt_pk_bf16_f32 v6, v{u0}, v{u1}")
                a(f"v_lshlrev_b32 v{g0}, 16, v5")
                a(f"v_and_b32 v{g1}, 0xffff0000, v5")
                a(f"v_lshlrev_b32 v{u0}, 16, v6")
                a(f"v_and_b32 v{u1}, 0xffff0000, v6")
                a(f"v_mul_f32 v5, v{g0}, v{g0}")
                a(f"v_mul_f32 v6, v{g1}, v{g1}")
                a("v_fma_f32 v5, v5, s51, v4")
                a("v_fma_f32 v6, v6, s51, v4")
                a(f"v_mul_f32 v5, v5, v{g0}")
                a(f"v_mul_f32 v6, v6, v{g1}")
                a("v_exp_f32 v5, v5")
                a("v_exp_f32 v6, v6")
                a("s_nop 0")
                a("v_add_f32 v5, 1.0, v5")
                a("v_add_f32 v6, 1.0, v6")
                a("v_rcp_f32 v5, v5")
                a("v_rcp_f32 v6, v6")
                a("s_nop 0")
                a(f"v_mul_f32 v5, v5, v{g0}")
                a(f"v_mul_f32 v6, v6, v{g1}")
                a("v_cvt_pk_bf16_f32 v5, v5, v6")
                a("v_and_b32 v6, 0xffff0000, v5")
                a("v_lshlrev_b32 v5, 16, v5")
                a(f"v_mul_f32 v{g0}, v5, v{u0}")
                a(f"v_mul_f32 v{g1}, v6, v{u1}")
            pack_store_prep(a, base)
            a("s_nop 1")
            a(f"v_permlane32_swap_b32 v{base}, v{base+2}")
            a(f"v_permlane32_swap_b32 v{base+1}, v{base+3}")
            a("s_nop 1")
            a(f"buffer_store_dwordx4 {vr(base,4)}, v{2+b}, s[20:23], s{46+m} offen")
    stamp(a, opt, 1, 2)
    a("s_endpgm")

    a.label(".k0_loader")
    a("s_sub_u32 s33, s33, 4")
    a(f"s_mul_i32 s41, s34, {128*1280}")
    a(f"s_add_u32 s41, s41, {XN_OFF}")
    add64(a, "s8", "s9", "s26", "s27", "s41")
    srd(a, 8, "s8", "s9", 128 * 1280)
    a("s_mul_i32 s41, s35, 192")
    a(f"s_mul_i32 s44, s33, {16*3072}")
    a("s_add_u32 s41, s41, s44")
    a(f"s_sub_u32 s45, {640*3072}, s41")
    add64(a, "s12", "s13", "s4", "s5", "s41")
    srd(a, 12, "s12", "s13", "s45")
    add64(a, "s16", "s17", "s6", "s7", "s41")
    srd(a, 16, "s16", "s17", "s45")
    a("s_mov_b32 s48, 10")
    kcontig_voffs(a, [2, 3, 4, 5], 1280, "s33", "v20", "v21")
    for j in range(3):
        a(f"v_add_u32 v20, {64*j}, v1")
        a("v_mul_u32_u24 v21, 171, v20")
        a("v_lshrrev_b32 v21, 11, v21")
        a("v_mul_u32_u24 v22, 12, v21")
        a("v_sub_u32 v22, v20, v22")
        a("v_mul_u32_u24 v21, 3072, v21")
        a(f"v_lshl_add_u32 v{6+j}, v22, 4, v21")
        a("v_xor_b32 v22, 2, v22")
        a(f"v_lshl_add_u32 v{9+j}, v22, 4, v21")
    a("s_mov_b32 s44, 0")
    a("s_mov_b32 s45, 0")
    a("s_mov_b32 s46, 0")
    a("s_lshl_b32 s47, s33, 12")
    a("s_mul_i32 s49, s33, 3072")
    a(f"s_add_u32 s50, s49, {GOFF}")
    a(f"s_add_u32 s51, s49, {UOFF}")
    for j in range(4):
        a(f"s_add_u32 s{52+j}, s47, {j*1024}")
    for j in range(3):
        a(f"s_add_u32 s{56+j}, s50, {j*1024}")
        a(f"s_add_u32 s{59+j}, s51, {j*1024}")
    instrs = []
    for j in range(4):
        instrs.append((8, 2 + j, f"s{52+j}", "s44"))
        if j < 3:
            instrs.append((12, 6 + j, f"s{56+j}", "s45"))
            instrs.append((16, 9 + j, f"s{59+j}", "s45"))
    loader_loop(a, "k0", instrs, SS, S, "s48", [("s44", 128), ("s45", 64 * 3072)], "s46")
    a.label(".k0_done")
    a("s_endpgm")
    nv = 256 if opt.get("stamps") else (core.nv + 7) // 8 * 8
    return name, a.text(), kernel_desc(name, nv, nv), f"; @launch kernel={name} grid=(256,1,1) block=(512,1,1) lds={S*SS}"


def gen_k2(opt):
    a = Asm()
    name = "k2_kernel"
    S = 8
    SS = 18432
    POFF = 10240
    NST = 20
    NL = 4
    a.raw(kernel_header(name))
    a("s_cmp_ge_u32 s2, 256")
    a("s_cbranch_scc1 .k2_done")
    a("s_load_dwordx2 s[24:25], s[0:1], 0")
    a("s_load_dwordx4 s[4:7], s[0:1], 24")
    a("s_load_dwordx2 s[28:29], s[0:1], 72")
    a("s_load_dwordx2 s[26:27], s[0:1], 88")
    stamp(a, opt, 3, 0)
    a("v_and_b32 v1, 63, v0")
    a("v_lshrrev_b32 v2, 6, v0")
    a("s_and_b32 s30, s2, 7")
    a("s_lshr_b32 s31, s2, 3")
    a("s_lshr_b32 s34, s30, 1")
    a("s_lshl_b32 s34, s34, 3")
    a("s_and_b32 s35, s31, 7")
    a("s_add_u32 s34, s34, s35")
    a("s_and_b32 s35, s30, 1")
    a("s_lshl_b32 s35, s35, 2")
    a("s_lshr_b32 s31, s31, 3")
    a("s_add_u32 s35, s35, s31")
    a("v_readfirstlane_b32 s33, v2")
    a("s_waitcnt lgkmcnt(0)")
    a(f"s_mul_i32 s41, s34, {4*61440}")
    a(f"s_add_u32 s41, s41, {PQG_OFF}")
    add64(a, "s16", "s17", "s26", "s27", "s41")
    srd(a, 16, "s16", "s17", 4 * 61440)
    a("s_cmp_ge_u32 s33, 4")
    a("s_cbranch_scc1 .k2_loader")

    bA = [[2 + g * 3 + kb for kb in range(2)] for g in range(3)]
    bB = [4 + g * 3 for g in range(3)]
    fr = 12
    fA = [[fr + st * 24 + e * 4 for e in range(5)] for st in range(2)]
    fB = [fr + st * 24 + 20 for st in range(2)]
    acc = [[60 + h * 20 + e * 4 for e in range(5)] for h in range(2)]
    xr = [100 + 2 * e for e in range(5)]
    gr = [110 + 2 * e for e in range(5)]
    xo = 120
    go = [121 + e for e in range(5)]
    NV = 128
    a("s_lshl_b32 s41, s34, 2")
    a("s_add_u32 s41, s41, s33")
    a(f"s_mul_i32 s41, s41, {16*1280}")
    a("s_mul_i32 s44, s35, 160")
    a("s_add_u32 s41, s41, s44")
    add64(a, "s8", "s9", "s24", "s25", "s41")
    srd(a, 8, "s8", "s9", 15 * 1280 + 160)
    add64(a, "s12", "s13", "s28", "s29", "s41")
    srd(a, 12, "s12", "s13", 15 * 1280 + 160)
    a("v_and_b32 v11, 15, v1")
    a(f"v_mul_u32_u24 v{xo}, 1280, v11")
    a("v_lshrrev_b32 v126, 4, v1")
    a(f"v_lshl_add_u32 v{xo}, v126, 3, v{xo}")
    for e in range(5):
        a.vm(f"buffer_load_dwordx2 {vr(xr[e],2)}, v{xo}, s[8:11], 0 offen offset:{32*e}", "x")
    a("s_mul_i32 s44, s35, 80")
    a("s_mul_i32 s45, s33, 61440")
    a(f"s_add_u32 s45, s45, {40*1024}")
    a("v_lshl_add_u32 v127, v126, 2, s44")
    for e in range(5):
        g = go[e]
        a(f"v_lshrrev_b32 v{g}, 3, v127")
        a(f"v_lshlrev_b32 v{g}, 8, v{g}")
        a(f"v_lshl_add_u32 v{g}, v11, 4, v{g}")
        a("v_and_b32 v2, 4, v127")
        a(f"v_lshl_add_u32 v{g}, v2, 1, v{g}")
        a.vm(f"buffer_load_dwordx2 {vr(gr[e],2)}, v{g}, s[16:19], s45 offen", "g")
        a("v_add_u32 v127, 16, v127")
    a("v_lshrrev_b32 v127, 1, v11")
    a("v_xor_b32 v127, v127, v126")
    a("v_lshlrev_b32 v11, 7, v11")
    a("s_lshl_b32 s41, s33, 11")
    a(f"s_add_u32 s41, s41, {POFF}")
    for g in range(3):
        for kb in range(2):
            a(f"v_xor_b32 v{bA[g][kb]}, {4*kb}, v127")
            a(f"v_lshl_add_u32 v{bA[g][kb]}, v{bA[g][kb]}, 4, v11")
            if g:
                a(f"v_add_u32 v{bA[g][kb]}, {g*3*SS}, v{bA[g][kb]}")
        a(f"v_lshl_add_u32 v{bB[g]}, v1, 4, s41")
        if g:
            a(f"v_add_u32 v{bB[g]}, {g*3*SS}, v{bB[g]}")
    for h in range(2):
        for e in range(5):
            for r in range(4):
                a(f"v_mov_b32 v{acc[h][e]+r}, 0")

    def reads(st, stage, kb):
        slot = stage % S
        g, so = slot // 3, (slot % 3) * SS
        r = [(f"ds_read_b128 {vr(fB[st],4)}, v{bB[g]} offset:{so+kb*1024}", ("B", st))]
        for e in range(5):
            r.append((f"ds_read_b128 {vr(fA[st][e],4)}, v{bA[g][kb]} offset:{so+e*2048}", ("A", st, e)))
        return r

    def step(st, h, nxt, barrier=False):
        rd = list(nxt)
        for e in range(5):
            a.lwait(("A", st, e), ("B", st))
            c = vr(acc[h][e], 4)
            a(f"v_mfma_f32_16x16x32_bf16 {c}, {vr(fA[st][e],4)}, {vr(fB[st],4)}, {c}")
            if e == 0 and barrier:
                a.lwait_all()
                a("s_barrier")
            for _ in range(2):
                if rd:
                    t, tag = rd.pop(0)
                    a.lds(t, tag)
        assert not rd
    a("s_barrier")
    for t, tag in reads(0, 0, 0):
        a.lds(t, tag)
    for stg in range(NST):
        h = stg // 10
        step(0, h, reads(1, stg, 1))
        if stg < NST - 1:
            step(1, h, reads(0, stg + 1, 0), barrier=True)
        else:
            step(1, h, [])
    stamp(a, opt, 3, 1)
    a("s_nop 7")
    a.vwait_all()
    for e in range(5):
        for p in range(2):
            y0, y1 = acc[0][e] + 2 * p, acc[0][e] + 2 * p + 1
            z0, z1 = acc[1][e] + 2 * p, acc[1][e] + 2 * p + 1
            a(f"v_cvt_pk_bf16_f32 v2, v{y0}, v{y1}")
            a(f"v_cvt_pk_bf16_f32 v3, v{z0}, v{z1}")
            a(f"v_lshlrev_b32 v{y0}, 16, v2")
            a(f"v_and_b32 v{y1}, 0xffff0000, v2")
            a(f"v_lshlrev_b32 v{z0}, 16, v3")
            a(f"v_and_b32 v{z1}, 0xffff0000, v3")
            a(f"v_sub_f32 v{y0}, v{y0}, v{z0}")
            a(f"v_sub_f32 v{y1}, v{y1}, v{z1}")
            a(f"v_cvt_pk_bf16_f32 v2, v{y0}, v{y1}")
            a(f"v_lshlrev_b32 v{y0}, 16, v2")
            a(f"v_and_b32 v{y1}, 0xffff0000, v2")
            a(f"v_lshlrev_b32 v{z0}, 16, v{gr[e]+p}")
            a(f"v_and_b32 v{z1}, 0xffff0000, v{gr[e]+p}")
            a(f"v_mul_f32 v{y0}, v{y0}, v{z0}")
            a(f"v_mul_f32 v{y1}, v{y1}, v{z1}")
            a(f"v_cvt_pk_bf16_f32 v2, v{y0}, v{y1}")
            a(f"v_lshlrev_b32 v{y0}, 16, v2")
            a(f"v_and_b32 v{y1}, 0xffff0000, v2")
            a(f"v_lshlrev_b32 v{z0}, 16, v{xr[e]+p}")
            a(f"v_and_b32 v{z1}, 0xffff0000, v{xr[e]+p}")
            a(f"v_add_f32 v{y0}, v{y0}, v{z0}")
            a(f"v_add_f32 v{y1}, v{y1}, v{z1}")
            a(f"v_cvt_pk_bf16_f32 v{xr[e]+p}, v{y0}, v{y1}")
        a(f"buffer_store_dwordx2 {vr(xr[e],2)}, v{xo}, s[12:15], 0 offen offset:{32*e}")
    stamp(a, opt, 3, 2)
    a("s_endpgm")

    a.label(".k2_loader")
    a("s_sub_u32 s33, s33, 4")
    a(f"s_mul_i32 s41, s35, {80*1280}")
    add64(a, "s8", "s9", "s4", "s5", "s41")
    srd(a, 8, "s8", "s9", 80 * 1280)
    add64(a, "s12", "s13", "s6", "s7", "s41")
    srd(a, 12, "s12", "s13", 80 * 1280)
    a("v_lshrrev_b32 v10, 3, v1")
    a("v_mul_u32_u24 v10, 1280, v10")
    a("v_lshrrev_b32 v11, 4, v1")
    a("v_xor_b32 v11, v11, v1")
    a("v_and_b32 v11, 7, v11")
    a("v_lshl_add_u32 v2, v11, 4, v10")
    a("v_xor_b32 v11, 4, v11")
    a("v_lshl_add_u32 v3, v11, 4, v10")
    a("v_lshlrev_b32 v4, 4, v1")
    allins = [("H", j) for j in range(10)] + [("P", j) for j in range(8)]
    parts = [allins[i::NL] for i in range(NL)]
    for w in range(NL):
        if w < NL - 1:
            a(f"s_cmp_lg_u32 s33, {w}")
            a(f"s_cbranch_scc1 .k2_ld{w+1}")
        a.vq = []

        def issue(stg):
            slot = stg % S
            for (k, j) in parts[w]:
                if k == "H":
                    a(f"s_mov_b32 m0, {slot*SS + j*1024}")
                    a(f"s_mov_b32 s44, {j*8*1280 + (stg % 10)*128}")
                    sd = 8 if stg < 10 else 12
                    a.vm(f"buffer_load_dwordx4 v{2+(j&1)}, {sr(sd,4)}, s44 offen lds", stg)
                else:
                    tt, kb = j >> 1, j & 1
                    a(f"s_mov_b32 m0, {slot*SS + POFF + j*1024}")
                    a(f"s_mov_b32 s44, {(tt*60 + 2*stg + kb)*1024}")
                    a.vm(f"buffer_load_dwordx4 v4, s[16:19], s44 offen lds", stg)
        for stg in range(S - 1):
            issue(stg)
        for stg in range(NST):
            a.vwait(stg)
            a("s_barrier")
            if stg + S - 1 < NST:
                issue(stg + S - 1)
        a("s_endpgm")
        if w < NL - 1:
            a.label(f".k2_ld{w+1}")
    a.label(".k2_done")
    a("s_endpgm")
    nv = 256 if opt.get("stamps") else NV
    return name, a.text(), kernel_desc(name, nv, nv), f"; @launch kernel={name} grid=(256,1,1) block=({256+64*NL},1,1) lds={S*SS}"


HEADER = """; Kernarg layout for this problem (96 bytes, ptrs only, base s[0:1]):
"""


def build(opt, gens=None):
    gens = gens or [gen_ln, gen_k0, gen_k1, gen_k2]
    ks = [g(opt) for g in gens]
    out = HEADER
    for k in ks:
        out += k[3] + "\n"
    out += '.amdgcn_target "amdgcn-amd-amdhsa--gfx950"\n'
    for k in ks:
        out += k[1]
    out += '.section .rodata,"a"\n'
    for k in ks:
        out += k[2]
    return out


if __name__ == "__main__":
    import sys, json
    opt = json.loads(sys.argv[2]) if len(sys.argv) > 2 else {}
    open(sys.argv[1], "w").write(build(opt))
```

```python
from asmlib import *
import struct

XN_OFF = 0
H_OFF = 4 << 20
PQG_OFF = 12 << 20
STAMP_OFF = 32 << 20

def f32(x):
    return "0x%08x" % struct.unpack("<I", struct.pack("<f", x))[0]

LOG2E = 1.4426950408889634
OPT = {}


def srd(a, s, base_lo, base_hi, nrec):
    if base_lo != f"s{s}":
        a(f"s_mov_b32 s{s}, {base_lo}")
    a(f"s_and_b32 s{s+1}, {base_hi}, 0xffff")
    a(f"s_mov_b32 s{s+2}, {nrec}")
    a(f"s_mov_b32 s{s+3}, 0x20000")


def add64(a, dlo, dhi, lo, hi, off):
    a(f"s_add_u32 {dlo}, {lo}, {off}")
    a(f"s_addc_u32 {dhi}, {hi}, 0")


def stamp(a, opt, kidx, slot, vb=248):
    if not opt.get("stamps"):
        return
    a(f"s_load_dwordx2 s[92:93], s[0:1], 88")
    a("s_memrealtime s[90:91]")
    a("s_memtime s[98:99]")
    a("s_waitcnt lgkmcnt(0)")
    a.lq = []
    a("s_getreg_b32 s99, hwreg(HW_REG_XCC_ID)")
    a(f"s_add_u32 s92, s92, {STAMP_OFF}")
    a("s_addc_u32 s93, s93, 0")
    a("s_and_b32 s93, s93, 0xffff")
    a("s_mov_b32 s94, 0x2000000")
    a("s_mov_b32 s95, 0x20000")
    a(f"s_add_u32 s96, s2, {kidx*512}")
    a("s_lshl_b32 s96, s96, 10")
    a(f"s_add_u32 s96, s96, {slot*16}")
    a(f"v_mov_b32 v{vb}, s90")
    a(f"v_mov_b32 v{vb+1}, s91")
    a(f"v_mov_b32 v{vb+2}, s98")
    a(f"v_mov_b32 v{vb+3}, s99")
    a(f"v_lshrrev_b32 v{vb+4}, 6, v0")
    a(f"v_lshlrev_b32 v{vb+4}, 6, v{vb+4}")
    a("s_nop 4")
    a.vm(f"buffer_store_dwordx4 v[{vb}:{vb+3}], v{vb+4}, s[92:95], s96 offen", "stamp")
    a("s_nop 1")


def rn_bf16(a, v):
    a(f"v_cvt_pk_bf16_f32 {v}, {v}, {v}")
    a(f"v_and_b32 {v}, 0xffff0000, {v}")


def half_sum(a, v, t):
    a("s_nop 1")
    a(f"v_add_f32_dpp {v}, {v}, {v} quad_perm:[1,0,3,2] row_mask:0xf bank_mask:0xf")
    a("s_nop 1")
    a(f"v_add_f32_dpp {v}, {v}, {v} quad_perm:[2,3,0,1] row_mask:0xf bank_mask:0xf")
    a("s_nop 1")
    a(f"v_add_f32_dpp {v}, {v}, {v} row_half_mirror row_mask:0xf bank_mask:0xf")
    a("s_nop 1")
    a(f"v_add_f32_dpp {v}, {v}, {v} row_mirror row_mask:0xf bank_mask:0xf")
    a(f"v_mov_b32 {t}, {v}")
    a("s_nop 1")
    a(f"v_permlane16_swap_b32 {v}, {t}")
    a("s_nop 1")
    a(f"v_add_f32 {v}, {v}, {t}")


def gen_ln(opt):
    a = Asm()
    name = "ln_kernel"
    a.raw(kernel_header(name))
    a("s_cmp_ge_u32 s2, 256")
    a("s_cbranch_scc1 .ln_done")
    a("s_load_dwordx2 s[4:5], s[0:1], 0")
    a("s_load_dwordx2 s[8:9], s[0:1], 88")
    stamp(a, opt, 0, 0)
    a("v_lshrrev_b32 v1, 5, v0")
    a("v_and_b32 v2, 31, v0")
    a("s_lshl_b32 s3, s2, 3")
    a("v_add_u32 v1, s3, v1")
    a("v_mul_u32_u24 v1, 1280, v1")
    a("v_lshl_add_u32 v1, v2, 3, v1")
    a("s_waitcnt lgkmcnt(0)")
    srd(a, 4, "s4", "s5", 2048 * 1280)
    srd(a, 8, "s8", "s9", 2048 * 1280)
    for i in range(5):
        a(f"buffer_load_dwordx2 v[{4+2*i}:{5+2*i}], v1, s[4:7], 0 offen offset:{256*i}")
    a("s_waitcnt vmcnt(0)")
    for i in range(10):
        a(f"v_lshlrev_b32 v{20+2*i}, 16, v{4+i}")
        a(f"v_and_b32 v{21+2*i}, 0xffff0000, v{4+i}")
    a("v_add_f32 v2, v20, v21")
    for i in range(2, 20):
        a(f"v_add_f32 v2, v2, v{20+i}")
    half_sum(a, "v2", "v3")
    a(f"v_mul_f32 v2, {f32(1.0/640)}, v2")
    a("v_sub_f32 v40, v20, v2")
    a("v_mul_f32 v41, v40, v40")
    for i in range(1, 20):
        a(f"v_sub_f32 v40, v{20+i}, v2")
        a("v_fmac_f32 v41, v40, v40")
    half_sum(a, "v41", "v3")
    a(f"v_mul_f32 v41, {f32(1.0/640)}, v41")
    rn_bf16(a, "v2")
    rn_bf16(a, "v41")
    a(f"v_add_f32 v41, {f32(1e-5)}, v41")
    rn_bf16(a, "v41")
    a("v_sqrt_f32 v41, v41")
    a("s_nop 0")
    rn_bf16(a, "v41")
    a("v_rcp_f32 v42, v41")
    a("s_nop 0")
    a("v_fma_f32 v43, -v41, v42, 1.0")
    a("v_fma_f32 v42, v43, v42, v42")
    for i in range(10):
        lo, hi = 20 + 2 * i, 21 + 2 * i
        a(f"v_sub_f32 v{lo}, v{lo}, v2")
        a(f"v_sub_f32 v{hi}, v{hi}, v2")
        a(f"v_cvt_pk_bf16_f32 v{4+i}, v{lo}, v{hi}")
        a(f"v_lshlrev_b32 v{lo}, 16, v{4+i}")
        a(f"v_and_b32 v{hi}, 0xffff0000, v{4+i}")
        a(f"v_mul_f32 v{lo}, v{lo}, v42")
        a(f"v_mul_f32 v{hi}, v{hi}, v42")
        a(f"v_cvt_pk_bf16_f32 v{4+i}, v{lo}, v{hi}")
    for i in range(5):
        a(f"buffer_store_dwordx2 v[{4+2*i}:{5+2*i}], v1, s[8:11], 0 offen offset:{256*i}")
    stamp(a, opt, 0, 1)
    a.label(".ln_done")
    a("s_endpgm")
    nv = 256 if opt.get("stamps") else 48
    return name, a.text(), kernel_desc(name, nv, nv), f"; @launch kernel={name} grid=(256,1,1) block=(256,1,1) lds=0"


class Core:
    def __init__(self, a, NA, SS, S, a_imm, pfx):
        self.a, self.NA, self.NB, self.SS, self.S, self.a_imm, self.pfx = a, NA, 2, SS, S, a_imm, pfx
        self.baseA = [2 + i for i in range(NA)]
        self.baseB = [6 + i for i in range(4)]
        fr = 12
        self.fA = [[fr + st * (NA + 2) * 4 + m * 4 for m in range(NA)] for st in range(2)]
        self.fB = [[fr + st * (NA + 2) * 4 + NA * 4 + b * 4 for b in range(2)] for st in range(2)]
        self.acc0 = fr + 2 * (NA + 2) * 4
        self.acc0 = (self.acc0 + 3) // 4 * 4
        self.nv = self.acc0 + NA * 2 * 16

    def acc(self, m, b):
        return self.acc0 + (m * 2 + b) * 16

    def reads(self, st, s):
        r = []

        def ra(m):
            for q in range(2):
                r.append((f"ds_read_b64_tr_b16 {vr(self.fA[st][m]+2*q,2)}, v{self.baseA[m]} offset:{self.a_imm(s,q)}", ("A", st, m)))

        def rb(b):
            r.append((f"ds_read_b128 {vr(self.fB[st][b],4)}, v{self.baseB[s]} offset:{b*4096}", ("B", st, b)))
        ra(0); rb(0); rb(1)
        for m in range(1, self.NA):
            ra(m)
        if OPT.get("no_rd"):
            return []
        return r

    def step(self, st, nxt_reads, fillers, barrier_after_first=False):
        a = self.a
        order = [(m, b) for m in range(self.NA) for b in range(2)]
        rd = list(nxt_reads)
        fl = list(fillers)
        for i, (m, b) in enumerate(order):
            a.lwait(("A", st, m), ("B", st, b))
            c = vr(self.acc(m, b), 16)
            if not OPT.get("no_mma"):
                a(f"v_mfma_f32_32x32x16_bf16 {c}, {vr(self.fA[st][m],4)}, {vr(self.fB[st][b],4)}, {c}")
            if i == 0 and barrier_after_first:
                a.lwait_all()
                a("s_barrier")
            for _ in range(3):
                if rd:
                    t, tag = rd.pop(0)
                    a.lds(t, tag)
            if not rd:
                for _ in range(3):
                    if fl:
                        a(fl.pop(0))
        assert not rd
        for f in fl:
            a(f)

    def mainloop(self, s_n, s_slot, s_delta):
        a = self.a
        for i in range(self.NA * 2 * 16):
            a(f"v_mov_b32 v{self.acc0+i}, 0")
        a(f"s_mov_b32 {s_slot}, 0")
        a(f"s_mov_b32 s60, {self.SS}")
        a(f"s_sub_u32 {s_n}, {s_n}, 1")
        a("s_barrier")
        for t, tag in self.reads(0, 0):
            a.lds(t, tag)
        loop = f".{self.pfx}_cloop"
        a.label(loop)
        upd = lambda r: f"v_add_u32 v{r}, {s_delta}, v{r}"
        sal = [f"s_add_u32 {s_slot}, {s_slot}, 1",
               f"s_cmp_eq_u32 {s_slot}, {self.S}",
               f"s_cselect_b32 {s_delta}, {(-(self.S-1)*self.SS) & 0xffffffff}, s60",
               f"s_cselect_b32 {s_slot}, 0, {s_slot}",
               f"s_sub_u32 {s_n}, {s_n}, 1"]
        self.step(0, self.reads(1, 1), sal)
        self.step(1, self.reads(0, 2), [upd(self.baseB[0]), upd(self.baseB[1])])
        self.step(0, self.reads(1, 3), [upd(self.baseB[2])] + [upd(r) for r in self.baseA])
        self.step(1, self.reads(0, 0), [upd(self.baseB[3]), f"s_cmp_lg_u32 {s_n}, 0"], barrier_after_first=True)
        a(f"s_cbranch_scc1 {loop}")
        self.step(0, self.reads(1, 1), [])
        self.step(1, self.reads(0, 2), [])
        self.step(0, self.reads(1, 3), [])
        self.step(1, [], [])


def loader_loop(a, pfx, instrs, SS, S, s_n, soffs, s_slot):
    ni = len(instrs)

    def issue():
        for (sd, vo, lo, so) in instrs:
            a(f"s_add_u32 m0, {s_slot}, {lo}")
            a("s_nop 0")
            if not OPT.get("no_dma"):
                a(f"buffer_load_dwordx4 v{vo}, {sr(sd,4)}, {so} offen lds")
        for (sg, st) in soffs:
            a(f"s_add_u32 {sg}, {sg}, {st}")
        a(f"s_add_u32 {s_slot}, {s_slot}, {SS}")
        a(f"s_cmp_ge_u32 {s_slot}, {S*SS}")
        a(f"s_cselect_b32 s40, {S*SS}, 0")
        a(f"s_sub_u32 {s_slot}, {s_slot}, s40")
    for _ in range(S - 1):
        issue()
    a(f"s_sub_u32 {s_n}, {s_n}, {S-1}")
    loop = f".{pfx}_lloop"
    a.label(loop)
    a(f"s_waitcnt vmcnt({ni*(S-2)})")
    a("s_barrier")
    issue()
    a(f"s_sub_u32 {s_n}, {s_n}, 1")
    a(f"s_cmp_lg_u32 {s_n}, 0")
    a(f"s_cbranch_scc1 {loop}")
    for k in range(S - 2, -1, -1):
        a(f"s_waitcnt vmcnt({ni*k})")
        a("s_barrier")


def kcontig_voffs(a, regs, pitch_sgpr_or_int, wave_sgpr, t0, t1):
    a(f"v_lshrrev_b32 {t0}, 3, v1")
    a(f"s_lshl_b32 s41, {wave_sgpr}, 5")
    a(f"v_add_u32 {t0}, s41, {t0}")
    a(f"s_mov_b32 s41, {pitch_sgpr_or_int}")
    a(f"v_mul_lo_u32 {t0}, {t0}, s41")
    a(f"v_lshrrev_b32 {t1}, 4, v1")
    a(f"v_xor_b32 {t1}, {t1}, v1")
    a(f"v_and_b32 {t1}, 7, {t1}")
    a(f"s_lshl_b32 s41, s41, 3")
    for j in range(4):
        r = regs[j]
        if j % 2 == 0:
            a(f"v_lshl_add_u32 v{r}, {t1}, 4, {t0}")
        else:
            a(f"v_xor_b32 v{r}, 4, {t1}")
            a(f"v_lshl_add_u32 v{r}, v{r}, 4, {t0}")
        if j < 3:
            a(f"v_add_u32 {t0}, s41, {t0}")


def kcontig_bases(a, core, wt_sgpr, t0, t1):
    a(f"v_and_b32 {t0}, 31, v1")
    a(f"s_lshl_b32 s41, {wt_sgpr}, 6")
    a(f"v_add_u32 {t0}, s41, {t0}")
    a(f"v_lshlrev_b32 {t0}, 7, {t0}")
    a(f"v_lshrrev_b32 {t1}, 1, v1")
    a(f"v_and_b32 {t1}, 7, {t1}")
    a(f"v_lshrrev_b32 v{core.baseB[0]}, 5, v1")
    a(f"v_xor_b32 {t1}, {t1}, v{core.baseB[0]}")
    for s in range(4):
        r = core.baseB[s]
        a(f"v_xor_b32 v{r}, {2*s}, {t1}")
        a(f"v_lshl_add_u32 v{r}, v{r}, 4, {t0}")


def pack_store_prep(a, base):
    for k in range(4):
        a(f"v_cvt_pk_bf16_f32 v{base+k}, v{base+2*k}, v{base+2*k+1}")


def gen_k1(opt):
    a = Asm()
    name = "k1_kernel"
    S = opt.get("k1_slots", 5)
    SS = 32768
    a.raw(kernel_header(name))
    a("s_cmp_ge_u32 s2, 256")
    a("s_cbranch_scc1 .k1_done")
    a("s_load_dwordx4 s[4:7], s[0:1], 8")
    a("s_load_dwordx2 s[24:25], s[0:1], 64")
    a("s_load_dwordx2 s[26:27], s[0:1], 88")
    a("v_and_b32 v1, 63, v0")
    a("v_lshrrev_b32 v2, 6, v0")
    if opt.get("k1_map", "xcd53") == "xcd53":
        a("s_and_b32 s30, s2, 7")
        a("s_lshr_b32 s31, s2, 3")
        a("s_cmp_lt_u32 s30, 5")
        a("s_cbranch_scc0 .k1_map_o")
        a("s_lshl_b32 s32, s30, 5")
        a("s_add_u32 s32, s32, s31")
        a("s_branch .k1_map_done")
        a.label(".k1_map_o")
        a("s_cmp_ge_u32 s31, 27")
        a("s_cbranch_scc1 .k1_done")
        a("s_sub_u32 s30, s30, 5")
        a("s_mul_i32 s32, s30, 27")
        a("s_add_u32 s32, s32, s31")
        a("s_add_u32 s32, s32, 160")
        a.label(".k1_map_done")
    elif opt.get("k1_map") == "even":
        a("s_and_b32 s30, s2, 7")
        a("s_lshr_b32 s31, s2, 3")
        a("s_cmp_lt_u32 s31, 20")
        a("s_cbranch_scc0 .k1_map_o")
        a("s_mul_i32 s32, s30, 20")
        a("s_add_u32 s32, s32, s31")
        a("s_branch .k1_map_done")
        a.label(".k1_map_o")
        a("s_cmp_ge_u32 s31, 30")
        a("s_cbranch_scc1 .k1_done")
        a("s_mul_i32 s32, s30, 10")
        a("s_add_u32 s32, s32, s31")
        a("s_add_u32 s32, s32, 140")
        a.label(".k1_map_done")
    else:
        a("s_mov_b32 s32, s2")
    a("s_cmp_ge_u32 s32, 240")
    a("s_cbranch_scc1 .k1_done")
    stamp(a, opt, 2, 0)
    a("v_readfirstlane_b32 s33, v2")
    a(f"s_mul_hi_u32 s34, s32, {(2**32 + 4)//5}")
    a("s_mul_i32 s35, s34, 5")
    a("s_sub_u32 s35, s32, s35")
    a("s_lshr_b32 s36, s34, 4")
    a("s_and_b32 s34, s34, 15")
    a("s_waitcnt lgkmcnt(0)")
    a("s_cmp_eq_u32 s36, 2")
    a("s_cbranch_scc1 .k1_set_o")
    a("s_cmp_eq_u32 s36, 0")
    a("s_cselect_b32 s8, s4, s6")
    a("s_cselect_b32 s9, s5, s7")
    a("s_lshl_b32 s37, s34, 19")
    add64(a, "s8", "s9", "s8", "s9", "s37")
    a("s_mov_b32 s10, 0x80000")
    add64(a, "s12", "s13", "s26", "s27", XN_OFF)
    a(f"s_mov_b32 s14, {2048*1280}")
    a("s_mov_b32 s16, 128")
    a("s_mov_b32 s18, 32")
    a("s_branch .k1_set_done")
    a.label(".k1_set_o")
    a(f"s_mul_i32 s37, s34, {24*16384}")
    a(f"s_add_u32 s37, s37, {H_OFF}")
    add64(a, "s8", "s9", "s26", "s27", "s37")
    a(f"s_mov_b32 s10, {24*16384}")
    a("s_mov_b32 s12, s24")
    a("s_mov_b32 s13, s25")
    a(f"s_mov_b32 s14, {1536*1280}")
    a("s_mov_b32 s16, 16384")
    a("s_mov_b32 s18, 24")
    a.label(".k1_set_done")
    a("s_and_b32 s9, s9, 0xffff")
    a("s_mov_b32 s11, 0x20000")
    a("s_lshl_b32 s37, s35, 8")
    add64(a, "s12", "s13", "s12", "s13", "s37")
    a("s_sub_u32 s14, s14, s37")
    a("s_and_b32 s13, s13, 0xffff")
    a("s_mov_b32 s15, 0x20000")
    a("s_cmp_ge_u32 s33, 4")
    a("s_cbranch_scc1 .k1_loader")

    core = Core(a, 2, SS, S, lambda s, q: 16384 + (16 * s + 4 * q) * 256, "k1")
    a("s_and_b32 s38, s33, 1")
    a("s_lshr_b32 s39, s33, 1")
    a("s_cmp_eq_u32 s36, 2")
    a("s_cbranch_scc1 .k1_cb_o")
    kcontig_bases(a, core, "s38", "v10", "v11")
    a("s_branch .k1_cb_done")
    a.label(".k1_cb_o")
    a("s_lshl_b32 s41, s38, 13")
    a("v_lshl_add_u32 v10, v1, 4, s41")
    for s in range(4):
        a(f"v_add_u32 v{core.baseB[s]}, {s*1024}, v10")
    a.label(".k1_cb_done")
    a("v_lshrrev_b32 v10, 5, v1")
    a("v_lshlrev_b32 v10, 11, v10")
    a("v_bfe_u32 v11, v1, 2, 2")
    a("v_lshl_add_u32 v10, v11, 8, v10")
    a(f"v_bfe_u32 v{core.baseA[0]}, v1, 4, 1")
    a(f"v_lshl_add_u32 v10, v{core.baseA[0]}, 5, v10")
    a(f"v_and_b32 v{core.baseA[0]}, 3, v1")
    a(f"v_lshl_add_u32 v10, v{core.baseA[0]}, 3, v10")
    a("s_lshl_b32 s41, s39, 1")
    for b in range(2):
        a(f"v_xor_b32 v{core.baseA[b]}, s41, v11")
        a(f"v_lshl_add_u32 v{core.baseA[b]}, v{core.baseA[b]}, 6, v10")
        a("s_add_u32 s41, s41, 1")
    core.mainloop("s18", "s42", "s43")
    stamp(a, opt, 2, 1)
    a("s_lshl_b32 s41, s34, 3")
    a("s_lshl_b32 s44, s38, 2")
    a("s_add_u32 s41, s41, s44")
    a("s_mul_i32 s41, s41, 60")
    a("s_mul_i32 s44, s36, 20")
    a("s_add_u32 s41, s41, s44")
    a("s_lshl_b32 s44, s35, 2")
    a("s_add_u32 s41, s41, s44")
    a("s_lshl_b32 s44, s39, 1")
    a("s_add_u32 s41, s41, s44")
    a("s_lshl_b32 s41, s41, 10")
    a(f"s_add_u32 s41, s41, {PQG_OFF}")
    add64(a, "s20", "s21", "s26", "s27", "s41")
    srd(a, 20, "s20", "s21", 4 * 61440)
    a("s_mov_b32 s45, 122880")
    a("v_bfe_u32 v2, v1, 4, 1")
    a("v_mul_u32_u24 v2, 61440, v2")
    a("v_lshrrev_b32 v3, 5, v1")
    a("v_lshl_add_u32 v2, v3, 8, v2")
    a("v_and_b32 v3, 15, v1")
    a("v_lshl_add_u32 v2, v3, 4, v2")
    a("s_nop 7")
    a("s_cmp_lg_u32 s36, 2")
    a("s_cbranch_scc1 .k1_pack")
    for i in range(0, 64, 2):
        r0, r1 = core.acc0 + i, core.acc0 + i + 1
        a(f"v_cvt_pk_bf16_f32 v4, v{r0}, v{r1}")
        a(f"v_lshlrev_b32 v{r0}, 16, v4")
        a(f"v_and_b32 v{r1}, 0xffff0000, v4")
        a(f"v_mul_f32 v5, {f32(-LOG2E)}, v{r0}")
        a(f"v_mul_f32 v6, {f32(-LOG2E)}, v{r1}")
        a("v_exp_f32 v5, v5")
        a("v_exp_f32 v6, v6")
        a("s_nop 0")
        a("v_add_f32 v5, 1.0, v5")
        a("v_add_f32 v6, 1.0, v6")
        a("v_rcp_f32 v5, v5")
        a("v_rcp_f32 v6, v6")
        a("s_nop 0")
        a(f"v_mul_f32 v{r0}, v{r0}, v5")
        a(f"v_mul_f32 v{r1}, v{r1}, v6")
    a.label(".k1_pack")
    for m in range(2):
        for b in range(2):
            for u in range(2):
                pack_store_prep(a, core.acc(m, b) + 8 * u)
    a("s_nop 1")
    for m in range(2):
        for b in range(2):
            for u in range(2):
                r = core.acc(m, b) + 8 * u
                a(f"v_permlane32_swap_b32 v{r}, v{r+2}")
                a(f"v_permlane32_swap_b32 v{r+1}, v{r+3}")
    a("s_nop 1")
    for m in range(2):
        for b in range(2):
            for u in range(2):
                r = core.acc(m, b) + 8 * u
                so = "s45" if b else "0"
                a(f"buffer_store_dwordx4 {vr(r,4)}, v2, s[20:23], {so} offen offset:{m*1024+u*512}")
    stamp(a, opt, 2, 2)
    a("s_endpgm")

    a.label(".k1_loader")
    a("s_sub_u32 s33, s33, 4")
    a("s_cmp_eq_u32 s36, 2")
    a("s_cbranch_scc1 .k1_lv_o")
    kcontig_voffs(a, [2, 3, 4, 5], 4096, "s33", "v10", "v11")
    a("s_branch .k1_lv_done")
    a.label(".k1_lv_o")
    a("s_lshl_b32 s41, s33, 12")
    a("v_lshl_add_u32 v2, v1, 4, s41")
    for j in range(1, 4):
        a(f"v_add_u32 v{2+j}, {1024*j}, v2")
    a.label(".k1_lv_done")
    a("v_lshrrev_b32 v10, 4, v1")
    a("v_lshlrev_b32 v11, 2, v10")
    a("v_xor_b32 v11, v11, v1")
    a("v_and_b32 v11, 15, v11")
    a("s_lshl_b32 s41, s33, 4")
    a("v_add_u32 v10, s41, v10")
    a("v_mul_u32_u24 v10, 1280, v10")
    a("v_lshl_add_u32 v6, v11, 4, v10")
    for j in range(1, 4):
        a(f"v_add_u32 v{6+j}, {5120*j}, v6")
    a("s_mov_b32 s44, 0")
    a("s_mov_b32 s45, 0")
    a("s_lshl_b32 s46, s33, 12")
    instrs = []
    for j in range(4):
        instrs.append((8, 2 + j, j * 1024, "s44"))
        instrs.append((12, 6 + j, 16384 + j * 1024, "s45"))
    loader_loop(a, "k1", instrs, SS, S, "s18", [("s44", "s16"), ("s45", 64 * 1280)], "s46")
    a.label(".k1_done")
    a("s_endpgm")
    nv = 256 if opt.get("stamps") else (core.nv + 7) // 8 * 8
    return name, a.text(), kernel_desc(name, nv, nv), f"; @launch kernel={name} grid=(256,1,1) block=(512,1,1) lds={S*SS}"


def gen_k0(opt):
    a = Asm()
    name = "k0_kernel"
    S = 4
    SS = 40960
    GOFF, UOFF = 16384, 28672
    a.raw(kernel_header(name))
    a("s_cmp_ge_u32 s2, 256")
    a("s_cbranch_scc1 .k0_done")
    a("s_load_dwordx4 s[4:7], s[0:1], 48")
    a("s_load_dwordx2 s[26:27], s[0:1], 88")
    stamp(a, opt, 1, 0)
    a("v_and_b32 v1, 63, v0")
    a("v_lshrrev_b32 v2, 6, v0")
    a("s_and_b32 s30, s2, 7")
    a("s_lshr_b32 s31, s2, 3")
    a("s_lshr_b32 s34, s30, 1")
    a("s_lshl_b32 s34, s34, 2")
    a("s_and_b32 s35, s31, 3")
    a("s_add_u32 s34, s34, s35")
    a("s_and_b32 s35, s30, 1")
    a("s_lshl_b32 s35, s35, 3")
    a("s_lshr_b32 s31, s31, 2")
    a("s_add_u32 s35, s35, s31")
    a("v_readfirstlane_b32 s33, v2")
    a("s_mov_b32 s18, 10")
    a("s_waitcnt lgkmcnt(0)")
    a("s_cmp_ge_u32 s33, 4")
    a("s_cbranch_scc1 .k0_loader")

    core = Core(a, 3, SS, S, lambda s, q: (16 * s + 4 * q) * 192, "k0")
    a("s_and_b32 s38, s33, 1")
    a("s_lshr_b32 s39, s33, 1")
    kcontig_bases(a, core, "s38", "v10", "v11")
    a("v_lshrrev_b32 v10, 5, v1")
    a("v_lshlrev_b32 v10, 3, v10")
    a("v_bfe_u32 v11, v1, 2, 2")
    a("v_add_u32 v10, v10, v11")
    a("v_mul_u32_u24 v10, 192, v10")
    a("v_and_b32 v11, 3, v1")
    a("v_lshl_add_u32 v10, v11, 3, v10")
    a("v_bfe_u32 v11, v1, 4, 1")
    a(f"v_mul_u32_u24 v{core.baseA[0]}, {UOFF-GOFF}, v11")
    a(f"v_add3_u32 v10, v10, v{core.baseA[0]}, 0")
    a(f"v_add_u32 v10, {GOFF}, v10")
    a("s_mul_i32 s41, s39, 3")
    for mm in range(3):
        a(f"v_xor_b32 v{core.baseA[mm]}, s41, v11")
        a(f"v_lshl_add_u32 v{core.baseA[mm]}, v{core.baseA[mm]}, 5, v10")
        a("s_add_u32 s41, s41, 1")
    core.mainloop("s18", "s42", "s43")
    stamp(a, opt, 1, 1)
    a(f"s_mul_i32 s41, s34, {24*16384}")
    a("s_lshl_b32 s44, s38, 13")
    a("s_add_u32 s41, s41, s44")
    a(f"s_add_u32 s41, s41, {H_OFF}")
    add64(a, "s20", "s21", "s26", "s27", "s41")
    srd(a, 20, "s20", "s21", 24 * 16384)
    a("s_mul_i32 s41, s35, 6")
    a("s_mul_i32 s44, s39, 3")
    a("s_add_u32 s41, s41, s44")
    for mm in range(3):
        a(f"s_lshr_b32 s{46+mm}, s41, 2")
        a(f"s_lshl_b32 s{46+mm}, s{46+mm}, 14")
        a("s_and_b32 s44, s41, 3")
        a("s_lshl_b32 s44, s44, 10")
        a(f"s_add_u32 s{46+mm}, s{46+mm}, s44")
        a("s_add_u32 s41, s41, 1")
    a("v_lshlrev_b32 v2, 4, v1")
    a("v_add_u32 v3, 4096, v2")
    a("s_nop 7")
    c1 = -2.0 * 0.7978845608028654 * LOG2E
    c2 = c1 * 0.044715
    a(f"s_mov_b32 s50, {f32(c1)}")
    a(f"s_mov_b32 s51, {f32(c2)}")
    a("v_mov_b32 v4, s50")
    for m in range(3):
        for b in range(2):
            base = core.acc(m, b)
            for i in range(0, 8, 2):
                g0, g1, u0, u1 = base + i, base + i + 1, base + 8 + i, base + 9 + i
                a(f"v_cvt_pk_bf16_f32 v5, v{g0}, v{g1}")
                a(f"v_cvt_pk_bf16_f32 v6, v{u0}, v{u1}")
                a(f"v_lshlrev_b32 v{g0}, 16, v5")
                a(f"v_and_b32 v{g1}, 0xffff0000, v5")
                a(f"v_lshlrev_b32 v{u0}, 16, v6")
                a(f"v_and_b32 v{u1}, 0xffff0000, v6")
                a(f"v_mul_f32 v5, v{g0}, v{g0}")
                a(f"v_mul_f32 v6, v{g1}, v{g1}")
                a("v_fma_f32 v5, v5, s51, v4")
                a("v_fma_f32 v6, v6, s51, v4")
                a(f"v_mul_f32 v5, v5, v{g0}")
                a(f"v_mul_f32 v6, v6, v{g1}")
                a("v_exp_f32 v5, v5")
                a("v_exp_f32 v6, v6")
                a("s_nop 0")
                a("v_add_f32 v5, 1.0, v5")
                a("v_add_f32 v6, 1.0, v6")
                a("v_rcp_f32 v5, v5")
                a("v_rcp_f32 v6, v6")
                a("s_nop 0")
                a(f"v_mul_f32 v5, v5, v{g0}")
                a(f"v_mul_f32 v6, v6, v{g1}")
                a("v_cvt_pk_bf16_f32 v5, v5, v6")
                a("v_and_b32 v6, 0xffff0000, v5")
                a("v_lshlrev_b32 v5, 16, v5")
                a(f"v_mul_f32 v{g0}, v5, v{u0}")
                a(f"v_mul_f32 v{g1}, v6, v{u1}")
            pack_store_prep(a, base)
            a("s_nop 1")
            a(f"v_permlane32_swap_b32 v{base}, v{base+2}")
            a(f"v_permlane32_swap_b32 v{base+1}, v{base+3}")
            a("s_nop 1")
            a(f"buffer_store_dwordx4 {vr(base,4)}, v{2+b}, s[20:23], s{46+m} offen")
    stamp(a, opt, 1, 2)
    a("s_endpgm")

    a.label(".k0_loader")
    a("s_sub_u32 s33, s33, 4")
    a(f"s_mul_i32 s41, s34, {128*1280}")
    a(f"s_add_u32 s41, s41, {XN_OFF}")
    add64(a, "s8", "s9", "s26", "s27", "s41")
    srd(a, 8, "s8", "s9", 128 * 1280)
    a("s_mul_i32 s41, s35, 192")
    a(f"s_mul_i32 s44, s33, {16*3072}")
    a("s_add_u32 s41, s41, s44")
    a(f"s_sub_u32 s45, {640*3072}, s41")
    add64(a, "s12", "s13", "s4", "s5", "s41")
    srd(a, 12, "s12", "s13", "s45")
    add64(a, "s16", "s17", "s6", "s7", "s41")
    srd(a, 16, "s16", "s17", "s45")
    a("s_mov_b32 s48, 10")
    kcontig_voffs(a, [2, 3, 4, 5], 1280, "s33", "v20", "v21")
    for j in range(3):
        a(f"v_add_u32 v20, {64*j}, v1")
        a("v_mul_u32_u24 v21, 171, v20")
        a("v_lshrrev_b32 v21, 11, v21")
        a("v_mul_u32_u24 v22, 12, v21")
        a("v_sub_u32 v22, v20, v22")
        a("v_mul_u32_u24 v21, 3072, v21")
        a(f"v_lshl_add_u32 v{6+j}, v22, 4, v21")
        a("v_xor_b32 v22, 2, v22")
        a(f"v_lshl_add_u32 v{9+j}, v22, 4, v21")
    a("s_mov_b32 s44, 0")
    a("s_mov_b32 s45, 0")
    a("s_mov_b32 s46, 0")
    a("s_lshl_b32 s47, s33, 12")
    a("s_mul_i32 s49, s33, 3072")
    a(f"s_add_u32 s50, s49, {GOFF}")
    a(f"s_add_u32 s51, s49, {UOFF}")
    for j in range(4):
        a(f"s_add_u32 s{52+j}, s47, {j*1024}")
    for j in range(3):
        a(f"s_add_u32 s{56+j}, s50, {j*1024}")
        a(f"s_add_u32 s{59+j}, s51, {j*1024}")
    instrs = []
    for j in range(4):
        instrs.append((8, 2 + j, f"s{52+j}", "s44"))
        if j < 3:
            instrs.append((12, 6 + j, f"s{56+j}", "s45"))
            instrs.append((16, 9 + j, f"s{59+j}", "s45"))
    loader_loop(a, "k0", instrs, SS, S, "s48", [("s44", 128), ("s45", 64 * 3072)], "s46")
    a.label(".k0_done")
    a("s_endpgm")
    nv = 256 if opt.get("stamps") else (core.nv + 7) // 8 * 8
    return name, a.text(), kernel_desc(name, nv, nv), f"; @launch kernel={name} grid=(256,1,1) block=(512,1,1) lds={S*SS}"


def gen_k2(opt):
    a = Asm()
    name = "k2_kernel"
    S = 8
    SS = 18432
    POFF = 10240
    NST = 20
    NL = 4
    a.raw(kernel_header(name))
    a("s_cmp_ge_u32 s2, 256")
    a("s_cbranch_scc1 .k2_done")
    a("s_load_dwordx2 s[24:25], s[0:1], 0")
    a("s_load_dwordx4 s[4:7], s[0:1], 24")
    a("s_load_dwordx2 s[28:29], s[0:1], 72")
    a("s_load_dwordx2 s[26:27], s[0:1], 88")
    stamp(a, opt, 3, 0)
    a("v_and_b32 v1, 63, v0")
    a("v_lshrrev_b32 v2, 6, v0")
    a("s_and_b32 s30, s2, 7")
    a("s_lshr_b32 s31, s2, 3")
    a("s_lshr_b32 s34, s30, 1")
    a("s_lshl_b32 s34, s34, 3")
    a("s_and_b32 s35, s31, 7")
    a("s_add_u32 s34, s34, s35")
    a("s_and_b32 s35, s30, 1")
    a("s_lshl_b32 s35, s35, 2")
    a("s_lshr_b32 s31, s31, 3")
    a("s_add_u32 s35, s35, s31")
    a("v_readfirstlane_b32 s33, v2")
    a("s_waitcnt lgkmcnt(0)")
    a(f"s_mul_i32 s41, s34, {4*61440}")
    a(f"s_add_u32 s41, s41, {PQG_OFF}")
    add64(a, "s16", "s17", "s26", "s27", "s41")
    srd(a, 16, "s16", "s17", 4 * 61440)
    a("s_cmp_ge_u32 s33, 4")
    a("s_cbranch_scc1 .k2_loader")

    bA = [[2 + g * 3 + kb for kb in range(2)] for g in range(3)]
    bB = [4 + g * 3 for g in range(3)]
    fr = 12
    fA = [[fr + st * 24 + e * 4 for e in range(5)] for st in range(2)]
    fB = [fr + st * 24 + 20 for st in range(2)]
    acc = [[60 + h * 20 + e * 4 for e in range(5)] for h in range(2)]
    xr = [100 + 2 * e for e in range(5)]
    gr = [110 + 2 * e for e in range(5)]
    xo = 120
    go = [121 + e for e in range(5)]
    NV = 128
    a("s_lshl_b32 s41, s34, 2")
    a("s_add_u32 s41, s41, s33")
    a(f"s_mul_i32 s41, s41, {16*1280}")
    a("s_mul_i32 s44, s35, 160")
    a("s_add_u32 s41, s41, s44")
    add64(a, "s8", "s9", "s24", "s25", "s41")
    srd(a, 8, "s8", "s9", 15 * 1280 + 160)
    add64(a, "s12", "s13", "s28", "s29", "s41")
    srd(a, 12, "s12", "s13", 15 * 1280 + 160)
    a("v_and_b32 v11, 15, v1")
    a(f"v_mul_u32_u24 v{xo}, 1280, v11")
    a("v_lshrrev_b32 v126, 4, v1")
    a(f"v_lshl_add_u32 v{xo}, v126, 3, v{xo}")
    for e in range(5):
        a.vm(f"buffer_load_dwordx2 {vr(xr[e],2)}, v{xo}, s[8:11], 0 offen offset:{32*e}", "x")
    a("s_mul_i32 s44, s35, 80")
    a("s_mul_i32 s45, s33, 61440")
    a(f"s_add_u32 s45, s45, {40*1024}")
    a("v_lshl_add_u32 v127, v126, 2, s44")
    for e in range(5):
        g = go[e]
        a(f"v_lshrrev_b32 v{g}, 3, v127")
        a(f"v_lshlrev_b32 v{g}, 8, v{g}")
        a(f"v_lshl_add_u32 v{g}, v11, 4, v{g}")
        a("v_and_b32 v2, 4, v127")
        a(f"v_lshl_add_u32 v{g}, v2, 1, v{g}")
        a.vm(f"buffer_load_dwordx2 {vr(gr[e],2)}, v{g}, s[16:19], s45 offen", "g")
        a("v_add_u32 v127, 16, v127")
    a("v_lshrrev_b32 v127, 1, v11")
    a("v_xor_b32 v127, v127, v126")
    a("v_lshlrev_b32 v11, 7, v11")
    a("s_lshl_b32 s41, s33, 11")
    a(f"s_add_u32 s41, s41, {POFF}")
    for g in range(3):
        for kb in range(2):
            a(f"v_xor_b32 v{bA[g][kb]}, {4*kb}, v127")
            a(f"v_lshl_add_u32 v{bA[g][kb]}, v{bA[g][kb]}, 4, v11")
            if g:
                a(f"v_add_u32 v{bA[g][kb]}, {g*3*SS}, v{bA[g][kb]}")
        a(f"v_lshl_add_u32 v{bB[g]}, v1, 4, s41")
        if g:
            a(f"v_add_u32 v{bB[g]}, {g*3*SS}, v{bB[g]}")
    for h in range(2):
        for e in range(5):
            for r in range(4):
                a(f"v_mov_b32 v{acc[h][e]+r}, 0")

    def reads(st, stage, kb):
        slot = stage % S
        g, so = slot // 3, (slot % 3) * SS
        r = [(f"ds_read_b128 {vr(fB[st],4)}, v{bB[g]} offset:{so+kb*1024}", ("B", st))]
        for e in range(5):
            r.append((f"ds_read_b128 {vr(fA[st][e],4)}, v{bA[g][kb]} offset:{so+e*2048}", ("A", st, e)))
        return r

    def step(st, h, nxt, barrier=False):
        rd = list(nxt)
        for e in range(5):
            a.lwait(("A", st, e), ("B", st))
            c = vr(acc[h][e], 4)
            a(f"v_mfma_f32_16x16x32_bf16 {c}, {vr(fA[st][e],4)}, {vr(fB[st],4)}, {c}")
            if e == 0 and barrier:
                a.lwait_all()
                a("s_barrier")
            for _ in range(2):
                if rd:
                    t, tag = rd.pop(0)
                    a.lds(t, tag)
        assert not rd
    a("s_barrier")
    for t, tag in reads(0, 0, 0):
        a.lds(t, tag)
    for stg in range(NST):
        h = stg // 10
        step(0, h, reads(1, stg, 1))
        if stg < NST - 1:
            step(1, h, reads(0, stg + 1, 0), barrier=True)
        else:
            step(1, h, [])
    stamp(a, opt, 3, 1)
    a("s_nop 7")
    a.vwait_all()
    for e in range(5):
        for p in range(2):
            y0, y1 = acc[0][e] + 2 * p, acc[0][e] + 2 * p + 1
            z0, z1 = acc[1][e] + 2 * p, acc[1][e] + 2 * p + 1
            a(f"v_cvt_pk_bf16_f32 v2, v{y0}, v{y1}")
            a(f"v_cvt_pk_bf16_f32 v3, v{z0}, v{z1}")
            a(f"v_lshlrev_b32 v{y0}, 16, v2")
            a(f"v_and_b32 v{y1}, 0xffff0000, v2")
            a(f"v_lshlrev_b32 v{z0}, 16, v3")
            a(f"v_and_b32 v{z1}, 0xffff0000, v3")
            a(f"v_sub_f32 v{y0}, v{y0}, v{z0}")
            a(f"v_sub_f32 v{y1}, v{y1}, v{z1}")
            a(f"v_cvt_pk_bf16_f32 v2, v{y0}, v{y1}")
            a(f"v_lshlrev_b32 v{y0}, 16, v2")
            a(f"v_and_b32 v{y1}, 0xffff0000, v2")
            a(f"v_lshlrev_b32 v{z0}, 16, v{gr[e]+p}")
            a(f"v_and_b32 v{z1}, 0xffff0000, v{gr[e]+p}")
            a(f"v_mul_f32 v{y0}, v{y0}, v{z0}")
            a(f"v_mul_f32 v{y1}, v{y1}, v{z1}")
            a(f"v_cvt_pk_bf16_f32 v2, v{y0}, v{y1}")
            a(f"v_lshlrev_b32 v{y0}, 16, v2")
            a(f"v_and_b32 v{y1}, 0xffff0000, v2")
            a(f"v_lshlrev_b32 v{z0}, 16, v{xr[e]+p}")
            a(f"v_and_b32 v{z1}, 0xffff0000, v{xr[e]+p}")
            a(f"v_add_f32 v{y0}, v{y0}, v{z0}")
            a(f"v_add_f32 v{y1}, v{y1}, v{z1}")
            a(f"v_cvt_pk_bf16_f32 v{xr[e]+p}, v{y0}, v{y1}")
        a(f"buffer_store_dwordx2 {vr(xr[e],2)}, v{xo}, s[12:15], 0 offen offset:{32*e}")
    stamp(a, opt, 3, 2)
    a("s_endpgm")

    a.label(".k2_loader")
    a("s_sub_u32 s33, s33, 4")
    a(f"s_mul_i32 s41, s35, {80*1280}")
    add64(a, "s8", "s9", "s4", "s5", "s41")
    srd(a, 8, "s8", "s9", 80 * 1280)
    add64(a, "s12", "s13", "s6", "s7", "s41")
    srd(a, 12, "s12", "s13", 80 * 1280)
    a("v_lshrrev_b32 v10, 3, v1")
    a("v_mul_u32_u24 v10, 1280, v10")
    a("v_lshrrev_b32 v11, 4, v1")
    a("v_xor_b32 v11, v11, v1")
    a("v_and_b32 v11, 7, v11")
    a("v_lshl_add_u32 v2, v11, 4, v10")
    a("v_xor_b32 v11, 4, v11")
    a("v_lshl_add_u32 v3, v11, 4, v10")
    a("v_lshlrev_b32 v4, 4, v1")
    allins = [("H", j) for j in range(10)] + [("P", j) for j in range(8)]
    parts = [allins[i::NL] for i in range(NL)]
    for w in range(NL):
        if w < NL - 1:
            a(f"s_cmp_lg_u32 s33, {w}")
            a(f"s_cbranch_scc1 .k2_ld{w+1}")
        a.vq = []

        def issue(stg):
            slot = stg % S
            for (k, j) in parts[w]:
                if k == "H":
                    a(f"s_mov_b32 m0, {slot*SS + j*1024}")
                    a(f"s_mov_b32 s44, {j*8*1280 + (stg % 10)*128}")
                    sd = 8 if stg < 10 else 12
                    a.vm(f"buffer_load_dwordx4 v{2+(j&1)}, {sr(sd,4)}, s44 offen lds", stg)
                else:
                    tt, kb = j >> 1, j & 1
                    a(f"s_mov_b32 m0, {slot*SS + POFF + j*1024}")
                    a(f"s_mov_b32 s44, {(tt*60 + 2*stg + kb)*1024}")
                    a.vm(f"buffer_load_dwordx4 v4, s[16:19], s44 offen lds", stg)
        for stg in range(S - 1):
            issue(stg)
        for stg in range(NST):
            a.vwait(stg)
            a("s_barrier")
            if stg + S - 1 < NST:
                issue(stg + S - 1)
        a("s_endpgm")
        if w < NL - 1:
            a.label(f".k2_ld{w+1}")
    a.label(".k2_done")
    a("s_endpgm")
    nv = 256 if opt.get("stamps") else NV
    return name, a.text(), kernel_desc(name, nv, nv), f"; @launch kernel={name} grid=(256,1,1) block=({256+64*NL},1,1) lds={S*SS}"


HEADER = """; Kernarg layout for this problem (96 bytes, ptrs only, base s[0:1]):
"""


def build(opt, gens=None):
    OPT.clear(); OPT.update(opt)
    gens = gens or [gen_ln, gen_k0, gen_k1, gen_k2]
    ks = [g(opt) for g in gens]
    out = HEADER
    for k in ks:
        out += k[3] + "\n"
    out += '.amdgcn_target "amdgcn-amd-amdhsa--gfx950"\n'
    for k in ks:
        out += k[1]
    out += '.section .rodata,"a"\n'
    for k in ks:
        out += k[2]
    return out


if __name__ == "__main__":
    import sys, json
    opt = json.loads(sys.argv[2]) if len(sys.argv) > 2 else {}
    open(sys.argv[1], "w").write(build(opt))
```

```python
from asmlib import *
import kernels as K1
from kernels import (f32, LOG2E, srd, add64, stamp, rn_bf16, half_sum, kcontig_voffs, kcontig_bases,
                     pack_store_prep, XN_OFF, H_OFF, PQG_OFF, STAMP_OFF, HEADER)

FLAG_OFF = 3 << 20
OPT = {}


def gen_ln(opt):
    a = Asm()
    name = "ln_kernel"
    nt = opt.get("ln_nt", "nt")
    a.raw(kernel_header(name))
    a("s_cmp_ge_u32 s2, 256")
    a("s_cbranch_scc1 .ln_done")
    a("s_load_dwordx2 s[4:5], s[0:1], 0")
    a("s_load_dwordx2 s[8:9], s[0:1], 88")
    a("s_load_dwordx4 s[12:15], s[0:1], 48")
    stamp(a, opt, 0, 0)
    a("v_lshrrev_b32 v1, 5, v0")
    a("v_and_b32 v2, 31, v0")
    a("s_bfe_u32 s3, s2, 0x20001")
    a("s_lshl_b32 s3, s3, 9")
    a("s_lshr_b32 s30, s2, 3")
    a("s_lshl_b32 s31, s30, 4")
    a("s_add_u32 s3, s3, s31")
    a("v_add_u32 v1, s3, v1")
    a("v_mul_u32_u24 v1, 1280, v1")
    a("v_lshl_add_u32 v1, v2, 3, v1")
    a("v_lshrrev_b32 v44, 6, v0")
    a("v_and_b32 v45, 63, v0")
    a("v_min_u32 v45, 59, v45")
    a("v_readfirstlane_b32 s33, v44")
    a("v_mul_u32_u24 v46, 43, v45")
    a("v_lshrrev_b32 v46, 9, v46")
    a("v_mul_u32_u24 v47, 12, v46")
    a("v_sub_u32 v47, v45, v47")
    a("v_mul_u32_u24 v46, 3072, v46")
    a("v_lshl_add_u32 v46, v47, 7, v46")
    a("s_mul_i32 s34, s30, 20")
    a("s_lshr_b32 s35, s33, 1")
    a("s_mul_i32 s35, s35, 5")
    a("s_add_u32 s34, s34, s35")
    a("s_mul_i32 s34, s34, 3072")
    a("s_and_b32 s35, s2, 1")
    a("s_mul_i32 s35, s35, 1536")
    a("s_add_u32 s34, s34, s35")
    a("s_waitcnt lgkmcnt(0)")
    srd(a, 4, "s4", "s5", 2048 * 1280)
    for i in range(5):
        a(f"buffer_load_dwordx2 v[{4+2*i}:{5+2*i}], v1, s[4:7], 0 offen offset:{256*i} {nt}")
    a("s_and_b32 s35, s33, 1")
    a("s_cmp_eq_u32 s35, 0")
    a("s_cselect_b32 s16, s12, s14")
    a("s_cselect_b32 s17, s13, s15")
    srd(a, 16, "s16", "s17", 640 * 3072)
    if opt.get("ln_pf", 1):
        a(f"buffer_load_dword v47, v46, s[16:19], s34 offen {opt.get('ln_pfnt','nt')}")
    a("s_lshl_b32 s35, s2, 4")
    a(f"s_add_u32 s35, s35, {FLAG_OFF}")
    add64(a, "s20", "s21", "s8", "s9", "s35")
    srd(a, 20, "s20", "s21", 16)
    srd(a, 8, "s8", "s9", 2048 * 1280)
    a("s_cmp_lg_u32 s33, 0")
    a("s_cbranch_scc1 .ln_noflag")
    a("v_lshlrev_b32 v45, 2, v0")
    a("v_mov_b32 v44, 0")
    a("s_mov_b64 exec, 15")
    a("buffer_store_dword v44, v45, s[20:23], 0 offen")
    a("s_mov_b64 exec, -1")
    a("s_waitcnt vmcnt(2)" if opt.get("ln_pf", 1) else "s_waitcnt vmcnt(1)")
    a("s_branch .ln_go")
    a.label(".ln_noflag")
    a("s_waitcnt vmcnt(1)" if opt.get("ln_pf", 1) else "s_waitcnt vmcnt(0)")
    a.label(".ln_go")
    for i in range(10):
        a(f"v_lshlrev_b32 v{20+2*i}, 16, v{4+i}")
        a(f"v_and_b32 v{21+2*i}, 0xffff0000, v{4+i}")
    a("v_add_f32 v2, v20, v21")
    for i in range(2, 20):
        a(f"v_add_f32 v2, v2, v{20+i}")
    half_sum(a, "v2", "v3")
    a(f"v_mul_f32 v2, {f32(1.0/640)}, v2")
    a("v_sub_f32 v40, v20, v2")
    a("v_mul_f32 v41, v40, v40")
    for i in range(1, 20):
        a(f"v_sub_f32 v40, v{20+i}, v2")
        a("v_fmac_f32 v41, v40, v40")
    half_sum(a, "v41", "v3")
    a(f"v_mul_f32 v41, {f32(1.0/640)}, v41")
    rn_bf16(a, "v2")
    rn_bf16(a, "v41")
    a(f"v_add_f32 v41, {f32(1e-5)}, v41")
    rn_bf16(a, "v41")
    a("v_sqrt_f32 v41, v41")
    a("s_nop 0")
    rn_bf16(a, "v41")
    a("v_rcp_f32 v42, v41")
    a("s_nop 0")
    a("v_fma_f32 v43, -v41, v42, 1.0")
    a("v_fma_f32 v42, v43, v42, v42")
    for i in range(10):
        lo, hi = 20 + 2 * i, 21 + 2 * i
        a(f"v_sub_f32 v{lo}, v{lo}, v2")
        a(f"v_sub_f32 v{hi}, v{hi}, v2")
        a(f"v_cvt_pk_bf16_f32 v{4+i}, v{lo}, v{hi}")
        a(f"v_lshlrev_b32 v{lo}, 16, v{4+i}")
        a(f"v_and_b32 v{hi}, 0xffff0000, v{4+i}")
        a(f"v_mul_f32 v{lo}, v{lo}, v42")
        a(f"v_mul_f32 v{hi}, v{hi}, v42")
        a(f"v_cvt_pk_bf16_f32 v{4+i}, v{lo}, v{hi}")
    for i in range(5):
        a(f"buffer_store_dwordx2 v[{4+2*i}:{5+2*i}], v1, s[8:11], 0 offen offset:{256*i} {opt.get('xn_st','')}")
    stamp(a, opt, 0, 1)
    a.label(".ln_done")
    a("s_endpgm")
    nv = 256 if opt.get("stamps") else 48
    return name, a.text(), kernel_desc(name, nv, nv), f"; @launch kernel={name} grid=(256,1,1) block=(512,1,1) lds=0"


class Core(K1.Core):
    def mainloop2(self, s_n, s_slot, s_delta, s_ss, slot0, last_barrier, hook=None, st=None):
        a = self.a
        for i in range(self.NA * 2 * 16):
            a(f"v_mov_b32 v{self.acc0+i}, 0")
        a(f"s_mov_b32 {s_slot}, {slot0}")
        a(f"s_mov_b32 {s_ss}, {self.SS}")
        a(f"s_sub_u32 {s_n}, {s_n}, 1")
        a("s_barrier")
        if st:
            st()
        for t, tag in self.reads(0, 0):
            a.lds(t, tag)
        loop = f".{self.pfx}_cloop"
        a.label(loop)
        upd = lambda r: f"v_add_u32 v{r}, {s_delta}, v{r}"
        sal = [f"s_add_u32 {s_slot}, {s_slot}, 1",
               f"s_cmp_eq_u32 {s_slot}, {self.S}",
               f"s_cselect_b32 {s_delta}, {(-(self.S-1)*self.SS) & 0xffffffff}, {s_ss}",
               f"s_cselect_b32 {s_slot}, 0, {s_slot}",
               f"s_sub_u32 {s_n}, {s_n}, 1"]
        self.step(0, self.reads(1, 1), sal)
        self.step(1, self.reads(0, 2), [upd(self.baseB[0]), upd(self.baseB[1])])
        self.step(0, self.reads(1, 3), [upd(self.baseB[2])] + [upd(r) for r in self.baseA])
        if hook:
            hook(a)
        self.step(1, self.reads(0, 0), [upd(self.baseB[3]), f"s_cmp_lg_u32 {s_n}, 0"], barrier_after_first=True)
        a(f"s_cbranch_scc1 {loop}")
        self.step(0, self.reads(1, 1), [])
        self.step(1, self.reads(0, 2), [])
        self.step(0, self.reads(1, 3), [])
        self.step(1, [], [], barrier_after_first=last_barrier)


class AsmND(Asm):
    def vm(self, s, tag):
        if " lds" in s and any(k in s for k in self.skip):
            return
        super().vm(s, tag)


def gen_kb(opt):
    a = AsmND()
    a.skip = opt.get("skip", [])
    name = "kb_kernel"
    S0, SS0 = 4, 40960
    GOFF, UOFF = 16384, 28672
    S1, SS1 = 5, 32768
    cnt = opt.get("c_nt", "")
    a.raw(kernel_header(name))
    a("s_cmp_ge_u32 s2, 256")
    a("s_cbranch_scc1 .kb_done")
    a("s_load_dwordx4 s[64:67], s[0:1], 8")
    a("s_load_dwordx4 s[4:7], s[0:1], 48")
    a("s_load_dwordx2 s[24:25], s[0:1], 64")
    a("s_load_dwordx2 s[26:27], s[0:1], 88")
    stamp(a, opt, 1, 0, 152)
    a("v_and_b32 v1, 63, v0")
    a("v_lshrrev_b32 v2, 6, v0")
    a("s_and_b32 s30, s2, 7")
    a("s_lshr_b32 s31, s2, 3")
    a("s_lshr_b32 s34, s30, 1")
    a("s_lshl_b32 s34, s34, 2")
    a("s_and_b32 s35, s31, 3")
    a("s_add_u32 s34, s34, s35")
    a("s_and_b32 s35, s30, 1")
    a("s_lshl_b32 s35, s35, 3")
    a("s_lshr_b32 s32, s31, 2")
    a("s_add_u32 s35, s35, s32")
    a("v_readfirstlane_b32 s33, v2")
    a("s_lshl_b32 s32, s30, 5")
    a("s_add_u32 s32, s32, s31")
    a("s_sub_u32 s36, s30, 5")
    a("s_mul_i32 s36, s36, 27")
    a("s_add_u32 s36, s36, s31")
    a("s_add_u32 s36, s36, 160")
    a("s_cmp_ge_u32 s31, 27")
    a("s_cselect_b32 s36, 240, s36")
    a("s_cmp_lt_u32 s30, 5")
    a("s_cselect_b32 s32, s32, s36")
    a(f"s_mul_hi_u32 s70, s32, {(2**32 + 4)//5}")
    a("s_mul_i32 s71, s70, 5")
    a("s_sub_u32 s71, s32, s71")
    a("s_lshr_b32 s72, s70, 4")
    a("s_and_b32 s70, s70, 15")
    a("s_waitcnt lgkmcnt(0)")
    a("s_cmp_ge_u32 s33, 4")
    a("s_cbranch_scc1 .kb_noncons")

    core = Core(a, 3, SS0, S0, lambda s, q: (16 * s + 4 * q) * 192, "k0")
    a("s_and_b32 s38, s33, 1")
    a("s_lshr_b32 s39, s33, 1")
    kcontig_bases(a, core, "s38", "v10", "v11")
    for s in range(4):
        a(f"v_add_u32 v{core.baseB[s]}, {2*SS0}, v{core.baseB[s]}")
    a("v_lshrrev_b32 v10, 5, v1")
    a("v_lshlrev_b32 v10, 3, v10")
    a("v_bfe_u32 v11, v1, 2, 2")
    a("v_add_u32 v10, v10, v11")
    a("v_mul_u32_u24 v10, 192, v10")
    a("v_and_b32 v11, 3, v1")
    a("v_lshl_add_u32 v10, v11, 3, v10")
    a("v_bfe_u32 v11, v1, 4, 1")
    a(f"v_mul_u32_u24 v{core.baseA[0]}, {UOFF-GOFF}, v11")
    a(f"v_add_u32 v10, v10, v{core.baseA[0]}")
    a(f"v_add_u32 v10, {GOFF+2*SS0}, v10")
    a("s_mul_i32 s41, s39, 3")
    for mm in range(3):
        a(f"v_xor_b32 v{core.baseA[mm]}, s41, v11")
        a(f"v_lshl_add_u32 v{core.baseA[mm]}, v{core.baseA[mm]}, 5, v10")
        a("s_add_u32 s41, s41, 1")
    a(f"s_mul_i32 s41, s34, {24*16384}")
    a("s_lshl_b32 s44, s38, 13")
    a("s_add_u32 s41, s41, s44")
    a(f"s_add_u32 s41, s41, {H_OFF}")
    add64(a, "s20", "s21", "s26", "s27", "s41")
    srd(a, 20, "s20", "s21", 24 * 16384)
    a("s_mul_i32 s41, s35, 6")
    a("s_mul_i32 s44, s39, 3")
    a("s_add_u32 s41, s41, s44")
    for mm in range(3):
        a(f"s_lshr_b32 s{46+mm}, s41, 2")
        a(f"s_lshl_b32 s{46+mm}, s{46+mm}, 14")
        a("s_and_b32 s44, s41, 3")
        a("s_lshl_b32 s44, s44, 10")
        a(f"s_add_u32 s{46+mm}, s{46+mm}, s44")
        a("s_add_u32 s41, s41, 1")
    a("s_lshl_b32 s41, s34, 8")
    a("s_lshl_b32 s44, s35, 4")
    a("s_add_u32 s41, s41, s44")
    a("s_lshl_b32 s44, s33, 2")
    a("s_add_u32 s41, s41, s44")
    a(f"s_add_u32 s41, s41, {FLAG_OFF}")
    add64(a, "s52", "s53", "s26", "s27", "s41")
    srd(a, 52, "s52", "s53", 4)
    a("s_mov_b32 s18, 10")
    core.mainloop2("s18", "s42", "s43", "s60", 2, True, st=lambda: stamp(a, opt, 3, 0, 152))
    stamp(a, opt, 1, 1, 152)
    c1 = -2.0 * 0.7978845608028654 * LOG2E
    c2 = c1 * 0.044715
    a("v_lshlrev_b32 v2, 4, v1")
    a("v_add_u32 v3, 4096, v2")
    a(f"v_mov_b32 v4, {f32(c1)}")
    a(f"v_mov_b32 v5, {f32(c1)}")
    a(f"v_mov_b32 v6, {f32(c2)}")
    a(f"v_mov_b32 v7, {f32(c2)}")
    a("v_mov_b32 v8, 1.0")
    a("v_mov_b32 v9, 1.0")
    a("s_nop 7")
    T = [12, 14, 16, 18]
    for m in range(3):
        for b in range(2):
            base = core.acc(m, b)
            G = [vr(base + 2 * i, 2) for i in range(4)]
            U = [vr(base + 8 + 2 * i, 2) for i in range(4)]
            for i in range(4):
                a(f"v_pk_mul_f32 {vr(T[i],2)}, {G[i]}, {G[i]}")
            for i in range(4):
                a(f"v_pk_fma_f32 {vr(T[i],2)}, {vr(T[i],2)}, v[6:7], v[4:5]")
            for i in range(4):
                a(f"v_pk_mul_f32 {vr(T[i],2)}, {vr(T[i],2)}, {G[i]}")
            for i in range(4):
                a(f"v_exp_f32 v{T[i]}, v{T[i]}")
                a(f"v_exp_f32 v{T[i]+1}, v{T[i]+1}")
            for i in range(4):
                a(f"v_pk_mul_f32 {G[i]}, {G[i]}, {U[i]}")
            for i in range(4):
                a(f"v_pk_add_f32 {vr(T[i],2)}, {vr(T[i],2)}, v[8:9]")
            for i in range(4):
                a(f"v_rcp_f32 v{T[i]}, v{T[i]}")
                a(f"v_rcp_f32 v{T[i]+1}, v{T[i]+1}")
            for i in range(4):
                a(f"v_pk_mul_f32 {G[i]}, {G[i]}, {vr(T[i],2)}")
            pack_store_prep(a, base)
            a("s_nop 1")
            a(f"v_permlane32_swap_b32 v{base}, v{base+2}")
            a(f"v_permlane32_swap_b32 v{base+1}, v{base+3}")
            a("s_nop 1")
            a(f"buffer_store_dwordx4 {vr(base,4)}, v{2+b}, s[20:23], s{46+m} offen sc1")
    stamp(a, opt, 1, 2, 152)

    def flag_store(a):
        a("s_waitcnt vmcnt(0)")
        a("v_mov_b32 v10, 0")
        a("v_mov_b32 v11, 1")
        a("s_mov_b64 exec, 1")
        a("buffer_store_dword v11, v10, s[52:55], 0 offen sc1")
        a("s_mov_b64 exec, -1")
    a("s_cmp_lt_u32 s72, 2")
    a("s_cbranch_scc1 .kb_c_pq")
    flag_store(a)
    a("s_cmp_eq_u32 s72, 3")
    a("s_cbranch_scc1 .kb_done")
    core = Core(a, 2, SS1, S1, lambda s, q: 16384 + (16 * s + 4 * q) * 256, "k1")
    a("s_lshl_b32 s41, s38, 13")
    a("v_lshl_add_u32 v10, v1, 4, s41")
    for s in range(4):
        a(f"v_add_u32 v{core.baseB[s]}, {s*1024}, v10")
    a("s_mov_b32 s18, 24")
    a("s_mov_b32 s19, -1")
    a("s_branch .kb_cb_done")
    a.label(".kb_c_pq")
    kcontig_bases(a, core, "s38", "v10", "v11")
    a("s_mov_b32 s18, 32")
    a(f"s_mov_b32 s19, {30 - opt.get('flag_delay', 1)}")
    a.label(".kb_cb_done")
    a("v_lshrrev_b32 v10, 5, v1")
    a("v_lshlrev_b32 v10, 11, v10")
    a("v_bfe_u32 v11, v1, 2, 2")
    a("v_lshl_add_u32 v10, v11, 8, v10")
    a(f"v_bfe_u32 v{core.baseA[0]}, v1, 4, 1")
    a(f"v_lshl_add_u32 v10, v{core.baseA[0]}, 5, v10")
    a(f"v_and_b32 v{core.baseA[0]}, 3, v1")
    a(f"v_lshl_add_u32 v10, v{core.baseA[0]}, 3, v10")
    a("s_lshl_b32 s41, s39, 1")
    for b in range(2):
        a(f"v_xor_b32 v{core.baseA[b]}, s41, v11")
        a(f"v_lshl_add_u32 v{core.baseA[b]}, v{core.baseA[b]}, 6, v10")
        a("s_add_u32 s41, s41, 1")
    def hook(a):
        a("s_cmp_lg_u32 s18, s19")
        a("s_cbranch_scc1 .kb_nohook")
        flag_store(a)
        a.label(".kb_nohook")
    core.mainloop2("s18", "s42", "s43", "s60", 0, False, hook, st=lambda: stamp(a, opt, 3, 1, 152))
    stamp(a, opt, 3, 2, 152)
    a("s_lshl_b32 s41, s70, 3")
    a("s_lshl_b32 s44, s38, 2")
    a("s_add_u32 s41, s41, s44")
    a("s_mul_i32 s41, s41, 60")
    a("s_mul_i32 s44, s72, 20")
    a("s_add_u32 s41, s41, s44")
    a("s_lshl_b32 s44, s71, 2")
    a("s_add_u32 s41, s41, s44")
    a("s_lshl_b32 s44, s39, 1")
    a("s_add_u32 s41, s41, s44")
    a("s_lshl_b32 s41, s41, 10")
    a(f"s_add_u32 s41, s41, {PQG_OFF}")
    add64(a, "s20", "s21", "s26", "s27", "s41")
    srd(a, 20, "s20", "s21", 4 * 61440)
    a("s_mov_b32 s45, 122880")
    a("v_bfe_u32 v2, v1, 4, 1")
    a("v_mul_u32_u24 v2, 61440, v2")
    a("v_lshrrev_b32 v3, 5, v1")
    a("v_lshl_add_u32 v2, v3, 8, v2")
    a("v_and_b32 v3, 15, v1")
    a("v_lshl_add_u32 v2, v3, 4, v2")
    a("s_cmp_eq_u32 s72, 1")
    a("s_cselect_b32 s44, 0x80008000, 0")
    a("s_nop 7")
    for m in range(2):
        for b in range(2):
            for u in range(2):
                r = core.acc(m, b) + 8 * u
                pack_store_prep(a, r)
                for k in range(4):
                    a(f"v_xor_b32 v{r+k}, s44, v{r+k}")
                a("s_nop 1")
                a(f"v_permlane32_swap_b32 v{r}, v{r+2}")
                a(f"v_permlane32_swap_b32 v{r+1}, v{r+3}")
                a("s_nop 1")
                so = "s45" if b else "0"
                a(f"buffer_store_dwordx4 {vr(r,4)}, v2, s[20:23], {so} offen offset:{m*1024+u*512} {opt.get('pq_st','')}")
    stamp(a, opt, 1, 3, 152)
    a("s_endpgm")

    a.label(".kb_noncons")
    a("s_cmp_ge_u32 s72, 2")
    a("s_cbranch_scc1 .kb_set_o")
    a("s_cmp_eq_u32 s72, 0")
    a("s_cselect_b32 s80, s64, s66")
    a("s_cselect_b32 s81, s65, s67")
    a("s_lshl_b32 s37, s70, 19")
    add64(a, "s80", "s81", "s80", "s81", "s37")
    a("s_mov_b32 s82, 0x80000")
    add64(a, "s84", "s85", "s26", "s27", XN_OFF)
    a(f"s_mov_b32 s86, {2048*1280}")
    a("s_mov_b32 s74, 128")
    a("s_mov_b32 s75, 32")
    a("s_branch .kb_set_done")
    a.label(".kb_set_o")
    a(f"s_mul_i32 s37, s70, {24*16384}")
    a(f"s_add_u32 s37, s37, {H_OFF}")
    add64(a, "s80", "s81", "s26", "s27", "s37")
    a(f"s_mov_b32 s82, {24*16384}")
    a("s_mov_b32 s84, s24")
    a("s_mov_b32 s85, s25")
    a(f"s_mov_b32 s86, {1536*1280}")
    a("s_mov_b32 s74, 16384")
    a("s_mov_b32 s75, 24")
    a.label(".kb_set_done")
    a("s_and_b32 s81, s81, 0xffff")
    a("s_mov_b32 s83, 0x20000")
    a("s_and_b32 s85, s85, 0xffff")
    a("s_mov_b32 s87, 0x20000")
    a("s_cmp_ge_u32 s33, 8")
    a("s_cbranch_scc1 .kb_pf")

    a("s_sub_u32 s33, s33, 4")
    a(f"s_mul_i32 s41, s34, {128*1280}")
    a(f"s_add_u32 s41, s41, {XN_OFF}")
    add64(a, "s8", "s9", "s26", "s27", "s41")
    srd(a, 8, "s8", "s9", 128 * 1280)
    a("s_mul_i32 s41, s35, 192")
    a(f"s_mul_i32 s44, s33, {16*3072}")
    a("s_add_u32 s41, s41, s44")
    a(f"s_sub_u32 s45, {640*3072}, s41")
    add64(a, "s12", "s13", "s4", "s5", "s41")
    srd(a, 12, "s12", "s13", "s45")
    add64(a, "s16", "s17", "s6", "s7", "s41")
    srd(a, 16, "s16", "s17", "s45")
    kcontig_voffs(a, [2, 3, 4, 5], 1280, "s33", "v20", "v21")
    for j in range(3):
        a(f"v_add_u32 v20, {64*j}, v1")
        a("v_mul_u32_u24 v21, 171, v20")
        a("v_lshrrev_b32 v21, 11, v21")
        a("v_mul_u32_u24 v22, 12, v21")
        a("v_sub_u32 v22, v20, v22")
        a("v_mul_u32_u24 v21, 3072, v21")
        a(f"v_lshl_add_u32 v{6+j}, v22, 4, v21")
        a("v_xor_b32 v22, 2, v22")
        a(f"v_lshl_add_u32 v{9+j}, v22, 4, v21")
    a("s_lshl_b32 s47, s33, 12")
    a("s_mul_i32 s49, s33, 3072")

    def issue0(g):
        base = ((g + 2) % S0) * SS0
        a(f"s_mov_b32 s44, {g*128}")
        a(f"s_mov_b32 s45, {g*64*3072}")
        for j in range(4):
            a(f"s_add_u32 m0, s47, {base + j*1024}")
            a("s_nop 0")
            a.vm(f"buffer_load_dwordx4 v{2+j}, s[8:11], s44 offen lds", ("k0", g))
            if j < 3:
                a(f"s_add_u32 m0, s49, {base + GOFF + j*1024}")
                a("s_nop 0")
                a.vm(f"buffer_load_dwordx4 v{6+j}, s[12:15], s45 offen lds", ("k0", g))
                a(f"s_add_u32 m0, s49, {base + UOFF + j*1024}")
                a("s_nop 0")
                a.vm(f"buffer_load_dwordx4 v{9+j}, s[16:19], s45 offen lds", ("k0", g))
    a.vq = []
    for g in range(3):
        issue0(g)
    a("s_cmp_ge_u32 s72, 2")
    a("s_cbranch_scc1 .kb_lv_o")
    kcontig_voffs(a, [12, 13, 14, 15], 4096, "s33", "v20", "v21")
    a("s_branch .kb_lv_done")
    a.label(".kb_lv_o")
    a("v_lshl_add_u32 v12, v1, 4, s47")
    for j in range(1, 4):
        a(f"v_add_u32 v{12+j}, {1024*j}, v12")
    a.label(".kb_lv_done")
    a("v_lshrrev_b32 v20, 4, v1")
    a("v_lshlrev_b32 v21, 2, v20")
    a("v_xor_b32 v21, v21, v1")
    a("v_and_b32 v21, 15, v21")
    a("s_lshl_b32 s41, s33, 4")
    a("v_add_u32 v20, s41, v20")
    a("v_mul_u32_u24 v20, 1280, v20")
    a("v_lshl_add_u32 v16, v21, 4, v20")
    a("s_lshl_b32 s41, s71, 8")
    a("v_add_u32 v16, s41, v16")
    for j in range(1, 4):
        a(f"v_add_u32 v{16+j}, {5120*j}, v16")
    a("s_mov_b32 s76, 0")
    a("s_mov_b32 s77, 0")
    for g in range(7):
        a.vwait(("k0", g))
        a("s_barrier")
        issue0(g + 3)

    def issue1(j, half, bflags=""):
        for jj in range(4):
            if "B" in half:
                a(f"s_add_u32 m0, s47, {j*SS1 + jj*1024}")
                a("s_nop 0")
                a.vm(f"buffer_load_dwordx4 v{12+jj}, s[80:83], s76 offen {bflags} lds", ("k1", j))
            if "A" in half:
                a(f"s_add_u32 m0, s47, {j*SS1 + 16384 + jj*1024}")
                a("s_nop 0")
                a.vm(f"buffer_load_dwordx4 v{16+jj}, s[84:87], s77 offen lds", ("k1", j))
        if "B" in half:
            a("s_add_u32 s76, s76, s74")
        if "A" in half:
            a(f"s_add_u32 s77, s77, {64*1280}")

    def steady(pfx, bflags):
        a("s_mov_b32 s46, s47")

        def issue_dyn(tag):
            for jj in range(4):
                a(f"s_add_u32 m0, s46, {jj*1024}")
                a("s_nop 0")
                a.vm(f"buffer_load_dwordx4 v{12+jj}, s[80:83], s76 offen {bflags} lds", tag)
                a(f"s_add_u32 m0, s46, {16384 + jj*1024}")
                a("s_nop 0")
                a.vm(f"buffer_load_dwordx4 v{16+jj}, s[84:87], s77 offen lds", tag)
            a("s_add_u32 s76, s76, s74")
            a(f"s_add_u32 s77, s77, {64*1280}")
            a(f"s_add_u32 s46, s46, {SS1}")
            a(f"s_cmp_ge_u32 s46, {S1*SS1}")
            a(f"s_cselect_b32 s40, {S1*SS1}, 0")
            a("s_sub_u32 s46, s46, s40")
        for j in range(1, 4):
            a.vwait(("k1", j))
            a("s_barrier")
            issue_dyn(("k1", j + 4))
        a("s_sub_u32 s75, s75, 8")
        a.label(f".{pfx}_lloop")
        a("s_waitcnt vmcnt(24)")
        a("s_barrier")
        issue_dyn("x")
        a("s_sub_u32 s75, s75, 1")
        a("s_cmp_lg_u32 s75, 0")
        a(f"s_cbranch_scc1 .{pfx}_lloop")
        for k in range(3, -1, -1):
            a(f"s_waitcnt vmcnt({8*k})")
            a("s_barrier")
        a("s_endpgm")

    a("s_cmp_ge_u32 s72, 2")
    a("s_cbranch_scc1 .kb_l_o")
    vq_save = list(a.vq)
    for g in range(7, 10):
        a.vwait(("k0", g))
        a("s_barrier")
        issue1(g - 7, "AB", cnt)
    a("s_barrier")
    issue1(3, "AB", cnt)
    issue1(4, "AB", cnt)
    a.vwait(("k1", 0))
    a("s_barrier")
    steady("kbp", cnt)
    a.label(".kb_l_o")
    a.vq = vq_save
    a("s_cmp_eq_u32 s72, 3")
    a("s_cselect_b32 s86, 0, s86")
    for g in range(7, 10):
        a.vwait(("k0", g))
        a("s_barrier")
        issue1(g - 7, "A")
    a("s_barrier")
    a("s_cmp_eq_u32 s72, 3")
    a("s_cbranch_scc1 .kb_done")
    issue1(3, "A")
    issue1(4, "A")
    a("s_lshl_b32 s41, s70, 8")
    a(f"s_add_u32 s41, s41, {FLAG_OFF}")
    add64(a, "s52", "s53", "s26", "s27", "s41")
    srd(a, 52, "s52", "s53", 256)
    a("v_lshlrev_b32 v20, 2, v1")
    a("s_mov_b32 s56, 200000")
    a.label(".kb_poll")
    a("buffer_load_dword v21, v20, s[52:55], 0 offen sc1")
    a("s_waitcnt vmcnt(0)")
    a("v_cmp_ne_u32 vcc, 0, v21")
    a("s_sub_u32 s56, s56, 1")
    a("s_cmp_eq_u32 s56, 0")
    a("s_cbranch_scc1 .kb_polled")
    a("s_cmp_eq_u64 vcc, -1")
    a("s_cbranch_scc1 .kb_polled")
    a("s_sleep 2")
    a("s_branch .kb_poll")
    a.label(".kb_polled")
    a.vq = []
    for j in range(5):
        issue1(j, "B", "sc1")
    a.vwait(("k1", 0))
    a("s_barrier")
    steady("kbo", "sc1")

    a.label(".kb_pf")
    a("s_load_dwordx2 s[8:9], s[0:1], 0")
    a("s_load_dwordx4 s[12:15], s[0:1], 24")
    a("v_and_b32 v2, 31, v1")
    a("s_mul_i32 s41, s71, 26")
    a("v_add_u32 v2, s41, v2")
    a("v_lshlrev_b32 v2, 12, v2")
    a("v_lshrrev_b32 v3, 5, v1")
    a("v_lshl_add_u32 v2, v3, 7, v2")
    a("v_min_u32 v3, 39, v1")
    a("s_mul_i32 s41, s31, 5120")
    a("v_lshl_add_u32 v3, v3, 7, s41")
    a("s_mul_i32 s41, s31, 25600")
    a("v_lshl_add_u32 v40, v1, 7, s41")
    for j in range(1, 4):
        a(f"v_add_u32 v{40+j}, {8192*j}, v40")
    a(f"v_min_u32 v43, {640*1280-128}, v43")
    a("s_mul_i32 s41, s31, 10240")
    a("v_lshl_add_u32 v44, v1, 7, s41")
    a("v_add_u32 v45, 8192, v44")
    a(f"v_min_u32 v45, {256*1280-128}, v45")
    a("s_waitcnt lgkmcnt(0)")
    a(f"s_mul_i32 s41, s30, {256*1280}")
    add64(a, "s8", "s9", "s8", "s9", "s41")
    srd(a, 8, "s8", "s9", 256 * 1280)
    srd(a, 16, "s14", "s15", 640 * 1280)
    srd(a, 12, "s12", "s13", 640 * 1280)
    pfn = opt.get("pf_nt", "nt")
    xfn = opt.get("pf_xn", "nt")
    k2ops = []
    for j in range(4):
        k2ops.append((f"v{40+j}", 12, 0, "nt"))
        k2ops.append((f"v{40+j}", 16, 0, "nt"))
    for j in range(2):
        k2ops.append((f"v{44+j}", 8, 0, "nt"))
    if not opt.get("pf_k2", 1):
        k2ops = []
    cops = [("v2", 80, p * 256, pfn) for p in range(16)]
    xops = [("v3", 84, p * 2 * 81920, xfn) for p in range(16)]
    B0 = opt.get("pf_b0", 1)

    def run(ops, nticks, burst):
        ops = list(ops)
        n = [0]

        def one():
            if ops:
                v, sd, so, fl = ops.pop(0)
                a(f"s_mov_b32 s44, {so}")
                a(f"buffer_load_dword v{8 + (n[0] % 32)}, {v}, {sr(sd,4)}, s44 offen {fl}")
                n[0] += 1
        for _ in range(burst):
            one()
        for t in range(nticks):
            if not ops:
                break
            a("s_barrier")
            one()
        while ops:
            one()
        a("s_endpgm")
    if not opt.get("pf", 1):
        a("s_endpgm")
    a("s_cmp_ge_u32 s72, 2")
    a("s_cbranch_scc1 .kb_pf_o")
    inter = []
    for p in range(16):
        inter += [cops[p], xops[p]]
    run(inter + k2ops, 42, 2 * B0)
    a.label(".kb_pf_o")
    inter = []
    k2o = list(k2ops)
    for p in range(12):
        inter.append((xops[p][0], xops[p][1], xops[p][2], "nt"))
        if p >= 2 and k2o:
            inter.append(k2o.pop(0))
    run(inter + k2o, 34, B0)
    a.label(".kb_done")
    a("s_endpgm")
    nv = 160 if opt.get('stamps') else 152
    return name, a.text(), kernel_desc(name, nv, nv), f"; @launch kernel={name} grid=(256,1,1) block=(576,1,1) lds={S1*SS1}"


def gen_k2(opt):
    a = Asm()
    name = "k2_kernel"
    S = 16
    SS = 10240
    NST = 20
    NL = 4
    a.raw(kernel_header(name))
    a("s_cmp_ge_u32 s2, 256")
    a("s_cbranch_scc1 .k2_done")
    a("s_load_dwordx2 s[24:25], s[0:1], 0")
    a("s_load_dwordx4 s[4:7], s[0:1], 24")
    a("s_load_dwordx2 s[28:29], s[0:1], 72")
    a("s_load_dwordx2 s[26:27], s[0:1], 88")
    a("v_and_b32 v1, 63, v0")
    a("v_lshrrev_b32 v2, 6, v0")
    a("s_and_b32 s30, s2, 7")
    a("s_lshr_b32 s31, s2, 3")
    a("s_lshl_b32 s34, s30, 2")
    a("s_and_b32 s35, s31, 3")
    a("s_add_u32 s34, s34, s35")
    a("s_lshr_b32 s35, s31, 2")
    a("v_readfirstlane_b32 s33, v2")
    a("s_cmp_ge_u32 s33, 4")
    a("s_cbranch_scc1 .k2_loader")

    bA = [[2 + g * 2 + kb for kb in range(2)] for g in range(3)]
    xo = 8
    fB = [12 + 4 * i for i in range(40)]
    fA = [[172 + st * 20 + e * 4 for e in range(5)] for st in range(2)]
    acc = [212 + e * 4 for e in range(5)]
    xr = [232 + 2 * e for e in range(5)]
    gr = [242 + 2 * e for e in range(5)]
    NV = 256
    a("s_lshl_b32 s41, s34, 2")
    a("s_add_u32 s41, s41, s33")
    a("s_mul_i32 s44, s41, 61440")
    a(f"s_add_u32 s44, s44, {PQG_OFF}")
    a("v_lshlrev_b32 v9, 4, v1")
    a("s_waitcnt lgkmcnt(0)")
    add64(a, "s16", "s17", "s26", "s27", "s44")
    srd(a, 16, "s16", "s17", 61440)
    stamp(a, opt, 2, 0, 172)
    pqn = opt.get("k2_pq", "")
    for i in range(40):
        so = "0" if i < 4 else f"s{50 + i // 4}"
        if i % 4 == 0 and i:
            a(f"s_mov_b32 s{50 + i // 4}, {i*1024}")
        a.vm(f"buffer_load_dwordx4 {vr(fB[i],4)}, v9, s[16:19], {so} offen offset:{(i % 4)*1024} {pqn}", ("B", i))
        if i == 3:
            a("v_and_b32 v11, 15, v1")
            a("v_lshrrev_b32 v10, 4, v1")
            a("s_mul_i32 s44, s35, 80")
            a(f"s_mov_b32 s45, {40*1024}")
            a("v_lshl_add_u32 v2, v10, 2, s44")
            for e in range(5):
                g = 3 + (e & 1)
                a(f"v_lshrrev_b32 v{g}, 3, v2")
                a(f"v_lshlrev_b32 v{g}, 8, v{g}")
                a(f"v_lshl_add_u32 v{g}, v11, 4, v{g}")
                a("v_and_b32 v5, 4, v2")
                a(f"v_lshl_add_u32 v{g}, v5, 1, v{g}")
                a.vm(f"buffer_load_dwordx2 {vr(gr[e],2)}, v{g}, s[16:19], s45 offen {pqn}", "g")
                a("v_add_u32 v2, 16, v2")
    a(f"s_mul_i32 s41, s41, {16*1280}")
    a("s_mul_i32 s44, s35, 160")
    a("s_add_u32 s41, s41, s44")
    add64(a, "s8", "s9", "s24", "s25", "s41")
    srd(a, 8, "s8", "s9", 15 * 1280 + 160)
    add64(a, "s12", "s13", "s28", "s29", "s41")
    srd(a, 12, "s12", "s13", 15 * 1280 + 160)
    a(f"v_mul_u32_u24 v{xo}, 1280, v11")
    a(f"v_lshl_add_u32 v{xo}, v10, 3, v{xo}")
    for e in range(5):
        a.vm(f"buffer_load_dwordx2 {vr(xr[e],2)}, v{xo}, s[8:11], 0 offen offset:{32*e}", "x")
    a("v_lshrrev_b32 v9, 1, v11")
    a("v_xor_b32 v9, v9, v10")
    a("v_lshlrev_b32 v11, 7, v11")
    for g in range(3):
        for kb in range(2):
            a(f"v_xor_b32 v{bA[g][kb]}, {4*kb}, v9")
            a(f"v_lshl_add_u32 v{bA[g][kb]}, v{bA[g][kb]}, 4, v11")
            if g:
                a(f"v_add_u32 v{bA[g][kb]}, {g*6*SS}, v{bA[g][kb]}")
    for e in range(5):
        for r in range(4):
            a(f"v_mov_b32 v{acc[e]+r}, 0")
    a.vwait("g")
    for e in range(5):
        for p in range(2):
            r = gr[e] + p
            a(f"v_lshlrev_b32 v9, 16, v{r}")
            a(f"v_and_b32 v10, 0xffff0000, v{r}")
            a(f"v_mul_f32 v11, {f32(-LOG2E)}, v9")
            a(f"v_mul_f32 v252, {f32(-LOG2E)}, v10")
            a("v_exp_f32 v11, v11")
            a("v_exp_f32 v252, v252")
            a("s_nop 0")
            a("v_add_f32 v11, 1.0, v11")
            a("v_add_f32 v252, 1.0, v252")
            a("v_rcp_f32 v11, v11")
            a("v_rcp_f32 v252, v252")
            a("s_nop 0")
            a("v_mul_f32 v9, v9, v11")
            a("v_mul_f32 v10, v10, v252")
            a(f"v_cvt_pk_bf16_f32 v{r}, v9, v10")

    def reads(st, stage, kb):
        slot = stage % S
        g, so = slot // 6, (slot % 6) * SS
        return [(f"ds_read_b128 {vr(fA[st][e],4)}, v{bA[g][kb]} offset:{so+e*2048}", ("A", st, e)) for e in range(5)]

    def step(st, i, nxt, barrier=False):
        rd = list(nxt)
        a.vwait(("B", i))
        for e in range(5):
            a.lwait(("A", st, e))
            c = vr(acc[e], 4)
            a(f"v_mfma_f32_16x16x32_bf16 {c}, {vr(fA[st][e],4)}, {vr(fB[i],4)}, {c}")
            if e == 0 and barrier:
                a.lwait_all()
                a("s_barrier")
            for _ in range(2):
                if rd:
                    t, tag = rd.pop(0)
                    a.lds(t, tag)
        assert not rd
    BP = opt.get("k2_bp", 2)
    a("s_barrier")
    for t, tag in reads(0, 0, 0):
        a.lds(t, tag)
    for stg in range(NST):
        step(0, 2 * stg, reads(1, stg, 1))
        if stg < NST - 1:
            step(1, 2 * stg + 1, reads(0, stg + 1, 0), barrier=((stg + 1) % BP == 0))
        else:
            step(1, 2 * stg + 1, [])
    stamp(a, opt, 2, 1, 12)
    a("s_nop 7")
    a.vwait_all()
    for e in range(5):
        for p in range(2):
            y0, y1 = acc[e] + 2 * p, acc[e] + 2 * p + 1
            a(f"v_cvt_pk_bf16_f32 v2, v{y0}, v{y1}")
            a(f"v_lshlrev_b32 v{y0}, 16, v2")
            a(f"v_and_b32 v{y1}, 0xffff0000, v2")
            a(f"v_lshlrev_b32 v3, 16, v{gr[e]+p}")
            a(f"v_and_b32 v4, 0xffff0000, v{gr[e]+p}")
            a(f"v_mul_f32 v{y0}, v{y0}, v3")
            a(f"v_mul_f32 v{y1}, v{y1}, v4")
            a(f"v_cvt_pk_bf16_f32 v2, v{y0}, v{y1}")
            a(f"v_lshlrev_b32 v{y0}, 16, v2")
            a(f"v_and_b32 v{y1}, 0xffff0000, v2")
            a(f"v_lshlrev_b32 v3, 16, v{xr[e]+p}")
            a(f"v_and_b32 v4, 0xffff0000, v{xr[e]+p}")
            a(f"v_add_f32 v{y0}, v{y0}, v3")
            a(f"v_add_f32 v{y1}, v{y1}, v4")
            a(f"v_cvt_pk_bf16_f32 v{xr[e]+p}, v{y0}, v{y1}")
        a(f"buffer_store_dwordx2 {vr(xr[e],2)}, v{xo}, s[12:15], 0 offen offset:{32*e}")
    stamp(a, opt, 2, 2, 12)
    a("s_endpgm")

    a.label(".k2_loader")
    a("s_sub_u32 s33, s33, 4")
    a(f"s_mul_i32 s41, s35, {80*1280}")
    a("v_lshrrev_b32 v10, 3, v1")
    a("v_mul_u32_u24 v10, 1280, v10")
    a("v_lshrrev_b32 v11, 4, v1")
    a("v_xor_b32 v11, v11, v1")
    a("v_and_b32 v11, 7, v11")
    a("v_lshl_add_u32 v2, v11, 4, v10")
    a("v_xor_b32 v11, 4, v11")
    a("v_lshl_add_u32 v3, v11, 4, v10")
    a("s_waitcnt lgkmcnt(0)")
    add64(a, "s8", "s9", "s4", "s5", "s41")
    srd(a, 8, "s8", "s9", 80 * 1280)
    add64(a, "s12", "s13", "s6", "s7", "s41")
    srd(a, 12, "s12", "s13", 80 * 1280)
    for w in range(NL):
        if w < NL - 1:
            a(f"s_cmp_lg_u32 s33, {w}")
            a(f"s_cbranch_scc1 .k2_ld{w+1}")
        a.vq = []

        def issue(stg):
            slot = stg % S
            for j in range(10):
                if (stg * 10 + j) % NL != w:
                    continue
                a(f"s_mov_b32 m0, {slot*SS + j*1024}")
                a(f"s_mov_b32 s44, {j*8*1280 + (stg % 10)*128}")
                sd = 8 if stg < 10 else 12
                a.vm(f"buffer_load_dwordx4 v{2+(j&1)}, {sr(sd,4)}, s44 offen lds", stg)
        for stg in range(S):
            issue(stg)
        nxt = S
        for stg in range(0, NST, BP):
            a.vwait(*range(stg, stg + BP))
            a("s_barrier")
            while nxt < NST and nxt - S < stg:
                issue(nxt)
                nxt += 1
        a("s_endpgm")
        if w < NL - 1:
            a.label(f".k2_ld{w+1}")
    a.label(".k2_done")
    a("s_endpgm")
    return name, a.text(), kernel_desc(name, NV, NV), f"; @launch kernel={name} grid=(256,1,1) block=({256+64*NL},1,1) lds={S*SS}"


def build(opt, gens=None):
    K1.OPT.clear(); K1.OPT.update(opt)
    gens = gens or [gen_ln, gen_kb, gen_k2]
    ks = [g(opt) for g in gens]
    out = HEADER
    for k in ks:
        out += k[3] + "\n"
    out += '.amdgcn_target "amdgcn-amd-amdhsa--gfx950"\n'
    for k in ks:
        out += k[1]
    out += '.section .rodata,"a"\n'
    for k in ks:
        out += k[2]
    return out


if __name__ == "__main__":
    import sys, json
    opt = json.loads(sys.argv[2]) if len(sys.argv) > 2 else {}
    open(sys.argv[1], "w").write(build(opt))
```

```python
from asmlib import *
import kernels as K1
from kernels import (f32, LOG2E, srd, add64, stamp, rn_bf16, half_sum, kcontig_voffs, kcontig_bases,
                     pack_store_prep, XN_OFF, H_OFF, PQG_OFF, STAMP_OFF, HEADER)

FLAG_OFF = 3 << 20
OPT = {}


def gen_ln(opt):
    a = Asm()
    name = "ln_kernel"
    nt = opt.get("ln_nt", "nt")
    a.raw(kernel_header(name))
    a("s_cmp_ge_u32 s2, 256")
    a("s_cbranch_scc1 .ln_done")
    a("s_load_dwordx2 s[4:5], s[0:1], 0")
    a("s_load_dwordx2 s[8:9], s[0:1], 88")
    a("s_load_dwordx4 s[12:15], s[0:1], 48")
    stamp(a, opt, 0, 0)
    a("v_lshrrev_b32 v1, 5, v0")
    a("v_and_b32 v2, 31, v0")
    a("s_bfe_u32 s3, s2, 0x20001")
    a("s_lshl_b32 s3, s3, 9")
    a("s_lshr_b32 s30, s2, 3")
    a("s_lshl_b32 s31, s30, 4")
    a("s_add_u32 s3, s3, s31")
    a("v_add_u32 v1, s3, v1")
    a("v_mul_u32_u24 v1, 1280, v1")
    a("v_lshl_add_u32 v1, v2, 3, v1")
    a("v_lshrrev_b32 v44, 6, v0")
    a("v_and_b32 v45, 63, v0")
    a("v_min_u32 v45, 59, v45")
    a("v_readfirstlane_b32 s33, v44")
    a("v_mul_u32_u24 v46, 43, v45")
    a("v_lshrrev_b32 v46, 9, v46")
    a("v_mul_u32_u24 v47, 12, v46")
    a("v_sub_u32 v47, v45, v47")
    a("v_mul_u32_u24 v46, 3072, v46")
    a("v_lshl_add_u32 v46, v47, 7, v46")
    a("s_mul_i32 s34, s30, 20")
    a("s_lshr_b32 s35, s33, 1")
    a("s_mul_i32 s35, s35, 5")
    a("s_add_u32 s34, s34, s35")
    a("s_mul_i32 s34, s34, 3072")
    a("s_and_b32 s35, s2, 1")
    a("s_mul_i32 s35, s35, 1536")
    a("s_add_u32 s34, s34, s35")
    a("s_waitcnt lgkmcnt(0)")
    srd(a, 4, "s4", "s5", 2048 * 1280)
    for i in range(5):
        a(f"buffer_load_dwordx2 v[{4+2*i}:{5+2*i}], v1, s[4:7], 0 offen offset:{256*i} {nt}")
    a("s_and_b32 s35, s33, 1")
    a("s_cmp_eq_u32 s35, 0")
    a("s_cselect_b32 s16, s12, s14")
    a("s_cselect_b32 s17, s13, s15")
    srd(a, 16, "s16", "s17", 640 * 3072)
    if opt.get("ln_pf", 1):
        a(f"buffer_load_dword v47, v46, s[16:19], s34 offen {opt.get('ln_pfnt','nt')}")
    a("s_lshl_b32 s35, s2, 4")
    a(f"s_add_u32 s35, s35, {FLAG_OFF}")
    add64(a, "s20", "s21", "s8", "s9", "s35")
    srd(a, 20, "s20", "s21", 16)
    srd(a, 8, "s8", "s9", 2048 * 1280)
    a("s_cmp_lg_u32 s33, 0")
    a("s_cbranch_scc1 .ln_noflag")
    a("v_lshlrev_b32 v45, 2, v0")
    a("v_mov_b32 v44, 0")
    a("s_mov_b64 exec, 15")
    a("buffer_store_dword v44, v45, s[20:23], 0 offen")
    a("s_mov_b64 exec, -1")
    a("s_waitcnt vmcnt(2)" if opt.get("ln_pf", 1) else "s_waitcnt vmcnt(1)")
    a("s_branch .ln_go")
    a.label(".ln_noflag")
    a("s_waitcnt vmcnt(1)" if opt.get("ln_pf", 1) else "s_waitcnt vmcnt(0)")
    a.label(".ln_go")
    for i in range(10):
        a(f"v_lshlrev_b32 v{20+2*i}, 16, v{4+i}")
        a(f"v_and_b32 v{21+2*i}, 0xffff0000, v{4+i}")
    a("v_add_f32 v2, v20, v21")
    for i in range(2, 20):
        a(f"v_add_f32 v2, v2, v{20+i}")
    half_sum(a, "v2", "v3")
    a(f"v_mul_f32 v2, {f32(1.0/640)}, v2")
    a("v_sub_f32 v40, v20, v2")
    a("v_mul_f32 v41, v40, v40")
    for i in range(1, 20):
        a(f"v_sub_f32 v40, v{20+i}, v2")
        a("v_fmac_f32 v41, v40, v40")
    half_sum(a, "v41", "v3")
    a(f"v_mul_f32 v41, {f32(1.0/640)}, v41")
    rn_bf16(a, "v2")
    rn_bf16(a, "v41")
    a(f"v_add_f32 v41, {f32(1e-5)}, v41")
    rn_bf16(a, "v41")
    a("v_sqrt_f32 v41, v41")
    a("s_nop 0")
    rn_bf16(a, "v41")
    a("v_rcp_f32 v42, v41")
    a("s_nop 0")
    a("v_fma_f32 v43, -v41, v42, 1.0")
    a("v_fma_f32 v42, v43, v42, v42")
    for i in range(10):
        lo, hi = 20 + 2 * i, 21 + 2 * i
        a(f"v_sub_f32 v{lo}, v{lo}, v2")
        a(f"v_sub_f32 v{hi}, v{hi}, v2")
        a(f"v_cvt_pk_bf16_f32 v{4+i}, v{lo}, v{hi}")
        a(f"v_lshlrev_b32 v{lo}, 16, v{4+i}")
        a(f"v_and_b32 v{hi}, 0xffff0000, v{4+i}")
        a(f"v_mul_f32 v{lo}, v{lo}, v42")
        a(f"v_mul_f32 v{hi}, v{hi}, v42")
        a(f"v_cvt_pk_bf16_f32 v{4+i}, v{lo}, v{hi}")
    for i in range(5):
        a(f"buffer_store_dwordx2 v[{4+2*i}:{5+2*i}], v1, s[8:11], 0 offen offset:{256*i} {opt.get('xn_st','')}")
    stamp(a, opt, 0, 1)
    a.label(".ln_done")
    a("s_endpgm")
    nv = 256 if opt.get("stamps") else 48
    return name, a.text(), kernel_desc(name, nv, nv), f"; @launch kernel={name} grid=(256,1,1) block=(512,1,1) lds=0"


class Core(K1.Core):
    def mainloop2(self, s_n, s_slot, s_delta, s_ss, slot0, last_barrier, hook=None, st=None):
        a = self.a
        for i in range(self.NA * 2 * 16):
            a(f"v_mov_b32 v{self.acc0+i}, 0")
        a(f"s_mov_b32 {s_slot}, {slot0}")
        a(f"s_mov_b32 {s_ss}, {self.SS}")
        a(f"s_sub_u32 {s_n}, {s_n}, 1")
        a("s_barrier")
        if st:
            st()
        for t, tag in self.reads(0, 0):
            a.lds(t, tag)
        loop = f".{self.pfx}_cloop"
        a.label(loop)
        upd = lambda r: f"v_add_u32 v{r}, {s_delta}, v{r}"
        sal = [f"s_add_u32 {s_slot}, {s_slot}, 1",
               f"s_cmp_eq_u32 {s_slot}, {self.S}",
               f"s_cselect_b32 {s_delta}, {(-(self.S-1)*self.SS) & 0xffffffff}, {s_ss}",
               f"s_cselect_b32 {s_slot}, 0, {s_slot}",
               f"s_sub_u32 {s_n}, {s_n}, 1"]
        self.step(0, self.reads(1, 1), sal)
        self.step(1, self.reads(0, 2), [upd(self.baseB[0]), upd(self.baseB[1])])
        self.step(0, self.reads(1, 3), [upd(self.baseB[2])] + [upd(r) for r in self.baseA])
        if hook:
            hook(a)
        self.step(1, self.reads(0, 0), [upd(self.baseB[3]), f"s_cmp_lg_u32 {s_n}, 0"], barrier_after_first=True)
        a(f"s_cbranch_scc1 {loop}")
        self.step(0, self.reads(1, 1), [])
        self.step(1, self.reads(0, 2), [])
        self.step(0, self.reads(1, 3), [])
        self.step(1, [], [], barrier_after_first=last_barrier)


class AsmND(Asm):
    def vm(self, s, tag):
        if " lds" in s and any(k in s for k in self.skip):
            return
        super().vm(s, tag)


def gen_kb(opt):
    a = AsmND()
    a.skip = opt.get("skip", [])
    name = "kb_kernel"
    S0, SS0 = 4, 40960
    GOFF, UOFF = 16384, 28672
    S1, SS1 = 5, 32768
    cnt = opt.get("c_nt", "")
    a.raw(kernel_header(name))
    a("s_cmp_ge_u32 s2, 256")
    a("s_cbranch_scc1 .kb_done")
    a("s_load_dwordx4 s[64:67], s[0:1], 8")
    a("s_load_dwordx4 s[4:7], s[0:1], 48")
    a("s_load_dwordx2 s[24:25], s[0:1], 64")
    a("s_load_dwordx2 s[26:27], s[0:1], 88")
    stamp(a, opt, 1, 0, 152)
    a("v_and_b32 v1, 63, v0")
    a("v_lshrrev_b32 v2, 6, v0")
    a("s_and_b32 s30, s2, 7")
    a("s_lshr_b32 s31, s2, 3")
    a("s_lshr_b32 s34, s30, 1")
    a("s_lshl_b32 s34, s34, 2")
    a("s_and_b32 s35, s31, 3")
    a("s_add_u32 s34, s34, s35")
    a("s_and_b32 s35, s30, 1")
    a("s_lshl_b32 s35, s35, 3")
    a("s_lshr_b32 s32, s31, 2")
    a("s_add_u32 s35, s35, s32")
    a("v_readfirstlane_b32 s33, v2")
    a("s_lshl_b32 s32, s30, 5")
    a("s_add_u32 s32, s32, s31")
    a("s_sub_u32 s36, s30, 5")
    a("s_mul_i32 s36, s36, 27")
    a("s_add_u32 s36, s36, s31")
    a("s_add_u32 s36, s36, 160")
    a("s_cmp_ge_u32 s31, 27")
    a("s_cselect_b32 s36, 240, s36")
    a("s_cmp_lt_u32 s30, 5")
    a("s_cselect_b32 s32, s32, s36")
    a(f"s_mul_hi_u32 s70, s32, {(2**32 + 4)//5}")
    a("s_mul_i32 s71, s70, 5")
    a("s_sub_u32 s71, s32, s71")
    a("s_lshr_b32 s72, s70, 4")
    a("s_and_b32 s70, s70, 15")
    a("s_waitcnt lgkmcnt(0)")
    a("s_cmp_ge_u32 s33, 4")
    a("s_cbranch_scc1 .kb_noncons")

    core = Core(a, 3, SS0, S0, lambda s, q: (16 * s + 4 * q) * 192, "k0")
    a("s_and_b32 s38, s33, 1")
    a("s_lshr_b32 s39, s33, 1")
    kcontig_bases(a, core, "s38", "v10", "v11")
    for s in range(4):
        a(f"v_add_u32 v{core.baseB[s]}, {2*SS0}, v{core.baseB[s]}")
    a("v_lshrrev_b32 v10, 5, v1")
    a("v_lshlrev_b32 v10, 3, v10")
    a("v_bfe_u32 v11, v1, 2, 2")
    a("v_add_u32 v10, v10, v11")
    a("v_mul_u32_u24 v10, 192, v10")
    a("v_and_b32 v11, 3, v1")
    a("v_lshl_add_u32 v10, v11, 3, v10")
    a("v_bfe_u32 v11, v1, 4, 1")
    a(f"v_mul_u32_u24 v{core.baseA[0]}, {UOFF-GOFF}, v11")
    a(f"v_add_u32 v10, v10, v{core.baseA[0]}")
    a(f"v_add_u32 v10, {GOFF+2*SS0}, v10")
    a("s_mul_i32 s41, s39, 3")
    for mm in range(3):
        a(f"v_xor_b32 v{core.baseA[mm]}, s41, v11")
        a(f"v_lshl_add_u32 v{core.baseA[mm]}, v{core.baseA[mm]}, 5, v10")
        a("s_add_u32 s41, s41, 1")
    a(f"s_mul_i32 s41, s34, {24*16384}")
    a("s_lshl_b32 s44, s38, 13")
    a("s_add_u32 s41, s41, s44")
    a(f"s_add_u32 s41, s41, {H_OFF}")
    add64(a, "s20", "s21", "s26", "s27", "s41")
    srd(a, 20, "s20", "s21", 24 * 16384)
    a("s_mul_i32 s41, s35, 6")
    a("s_mul_i32 s44, s39, 3")
    a("s_add_u32 s41, s41, s44")
    for mm in range(3):
        a(f"s_lshr_b32 s{46+mm}, s41, 2")
        a(f"s_lshl_b32 s{46+mm}, s{46+mm}, 14")
        a("s_and_b32 s44, s41, 3")
        a("s_lshl_b32 s44, s44, 10")
        a(f"s_add_u32 s{46+mm}, s{46+mm}, s44")
        a("s_add_u32 s41, s41, 1")
    a("s_lshl_b32 s41, s34, 8")
    a("s_lshl_b32 s44, s35, 4")
    a("s_add_u32 s41, s41, s44")
    a("s_lshl_b32 s44, s33, 2")
    a("s_add_u32 s41, s41, s44")
    a(f"s_add_u32 s41, s41, {FLAG_OFF}")
    add64(a, "s52", "s53", "s26", "s27", "s41")
    srd(a, 52, "s52", "s53", 4)
    a("s_mov_b32 s18, 10")
    core.mainloop2("s18", "s42", "s43", "s60", 2, True, st=lambda: stamp(a, opt, 3, 0, 152))
    stamp(a, opt, 1, 1, 152)
    c1 = -2.0 * 0.7978845608028654 * LOG2E
    c2 = c1 * 0.044715
    a("v_lshlrev_b32 v2, 4, v1")
    a("v_add_u32 v3, 4096, v2")
    a(f"v_mov_b32 v4, {f32(c1)}")
    a(f"v_mov_b32 v5, {f32(c1)}")
    a(f"v_mov_b32 v6, {f32(c2)}")
    a(f"v_mov_b32 v7, {f32(c2)}")
    a("v_mov_b32 v8, 1.0")
    a("v_mov_b32 v9, 1.0")
    a("s_nop 7")
    T = [12, 14, 16, 18]
    for m in range(3):
        for b in range(2):
            base = core.acc(m, b)
            G = [vr(base + 2 * i, 2) for i in range(4)]
            U = [vr(base + 8 + 2 * i, 2) for i in range(4)]
            for i in range(4):
                a(f"v_pk_mul_f32 {vr(T[i],2)}, {G[i]}, {G[i]}")
            for i in range(4):
                a(f"v_pk_fma_f32 {vr(T[i],2)}, {vr(T[i],2)}, v[6:7], v[4:5]")
            for i in range(4):
                a(f"v_pk_mul_f32 {vr(T[i],2)}, {vr(T[i],2)}, {G[i]}")
            for i in range(4):
                a(f"v_exp_f32 v{T[i]}, v{T[i]}")
                a(f"v_exp_f32 v{T[i]+1}, v{T[i]+1}")
            for i in range(4):
                a(f"v_pk_mul_f32 {G[i]}, {G[i]}, {U[i]}")
            for i in range(4):
                a(f"v_pk_add_f32 {vr(T[i],2)}, {vr(T[i],2)}, v[8:9]")
            for i in range(4):
                a(f"v_rcp_f32 v{T[i]}, v{T[i]}")
                a(f"v_rcp_f32 v{T[i]+1}, v{T[i]+1}")
            for i in range(4):
                a(f"v_pk_mul_f32 {G[i]}, {G[i]}, {vr(T[i],2)}")
            pack_store_prep(a, base)
            a("s_nop 1")
            a(f"v_permlane32_swap_b32 v{base}, v{base+2}")
            a(f"v_permlane32_swap_b32 v{base+1}, v{base+3}")
            a("s_nop 1")
            a(f"buffer_store_dwordx4 {vr(base,4)}, v{2+b}, s[20:23], s{46+m} offen sc1")
    stamp(a, opt, 1, 2, 152)

    def flag_store(a):
        a("s_waitcnt vmcnt(0)")
        a("v_mov_b32 v10, 0")
        a("v_mov_b32 v11, 1")
        a("s_mov_b64 exec, 1")
        a("buffer_store_dword v11, v10, s[52:55], 0 offen sc1")
        a("s_mov_b64 exec, -1")
    a("s_cmp_lt_u32 s72, 2")
    a("s_cbranch_scc1 .kb_c_pq")
    flag_store(a)
    a("s_cmp_eq_u32 s72, 3")
    a("s_cbranch_scc1 .kb_idle")
    core = Core(a, 2, SS1, S1, lambda s, q: 16384 + (16 * s + 4 * q) * 256, "k1")
    a("s_lshl_b32 s41, s38, 13")
    a("v_lshl_add_u32 v10, v1, 4, s41")
    for s in range(4):
        a(f"v_add_u32 v{core.baseB[s]}, {s*1024}, v10")
    a("s_mov_b32 s18, 24")
    a("s_mov_b32 s19, -1")
    a("s_branch .kb_cb_done")
    a.label(".kb_c_pq")
    kcontig_bases(a, core, "s38", "v10", "v11")
    a("s_mov_b32 s18, 32")
    a(f"s_mov_b32 s19, {30 - opt.get('flag_delay', 1)}")
    a.label(".kb_cb_done")
    a("v_lshrrev_b32 v10, 5, v1")
    a("v_lshlrev_b32 v10, 11, v10")
    a("v_bfe_u32 v11, v1, 2, 2")
    a("v_lshl_add_u32 v10, v11, 8, v10")
    a(f"v_bfe_u32 v{core.baseA[0]}, v1, 4, 1")
    a(f"v_lshl_add_u32 v10, v{core.baseA[0]}, 5, v10")
    a(f"v_and_b32 v{core.baseA[0]}, 3, v1")
    a(f"v_lshl_add_u32 v10, v{core.baseA[0]}, 3, v10")
    a("s_lshl_b32 s41, s39, 1")
    for b in range(2):
        a(f"v_xor_b32 v{core.baseA[b]}, s41, v11")
        a(f"v_lshl_add_u32 v{core.baseA[b]}, v{core.baseA[b]}, 6, v10")
        a("s_add_u32 s41, s41, 1")
    def hook(a):
        a("s_cmp_lg_u32 s18, s19")
        a("s_cbranch_scc1 .kb_nohook")
        flag_store(a)
        a.label(".kb_nohook")
    core.mainloop2("s18", "s42", "s43", "s60", 0, False, hook, st=lambda: stamp(a, opt, 3, 1, 152))
    stamp(a, opt, 3, 2, 152)
    a("s_lshl_b32 s41, s70, 3")
    a("s_lshl_b32 s44, s38, 2")
    a("s_add_u32 s41, s41, s44")
    a("s_mul_i32 s41, s41, 60")
    a("s_mul_i32 s44, s72, 20")
    a("s_add_u32 s41, s41, s44")
    a("s_lshl_b32 s44, s71, 2")
    a("s_add_u32 s41, s41, s44")
    a("s_lshl_b32 s44, s39, 1")
    a("s_add_u32 s41, s41, s44")
    a("s_lshl_b32 s41, s41, 10")
    a(f"s_add_u32 s41, s41, {PQG_OFF}")
    add64(a, "s20", "s21", "s26", "s27", "s41")
    srd(a, 20, "s20", "s21", 4 * 61440)
    a("s_mov_b32 s45, 122880")
    a("v_bfe_u32 v2, v1, 4, 1")
    a("v_mul_u32_u24 v2, 61440, v2")
    a("v_lshrrev_b32 v3, 5, v1")
    a("v_lshl_add_u32 v2, v3, 8, v2")
    a("v_and_b32 v3, 15, v1")
    a("v_lshl_add_u32 v2, v3, 4, v2")
    a("s_cmp_eq_u32 s72, 1")
    a("s_cselect_b32 s44, 0x80008000, 0")
    a("s_nop 7")
    for m in range(2):
        for b in range(2):
            for u in range(2):
                r = core.acc(m, b) + 8 * u
                pack_store_prep(a, r)
                for k in range(4):
                    a(f"v_xor_b32 v{r+k}, s44, v{r+k}")
                a("s_nop 1")
                a(f"v_permlane32_swap_b32 v{r}, v{r+2}")
                a(f"v_permlane32_swap_b32 v{r+1}, v{r+3}")
                a("s_nop 1")
                so = "s45" if b else "0"
                a(f"buffer_store_dwordx4 {vr(r,4)}, v2, s[20:23], {so} offen offset:{m*1024+u*512} {opt.get('pq_st','')}")
    stamp(a, opt, 1, 3, 152)
    a("s_endpgm")

    a.label(".kb_noncons")
    a("s_cmp_ge_u32 s72, 2")
    a("s_cbranch_scc1 .kb_set_o")
    a("s_cmp_eq_u32 s72, 0")
    a("s_cselect_b32 s80, s64, s66")
    a("s_cselect_b32 s81, s65, s67")
    a("s_lshl_b32 s37, s70, 19")
    add64(a, "s80", "s81", "s80", "s81", "s37")
    a("s_mov_b32 s82, 0x80000")
    add64(a, "s84", "s85", "s26", "s27", XN_OFF)
    a(f"s_mov_b32 s86, {2048*1280}")
    a("s_mov_b32 s74, 128")
    a("s_mov_b32 s75, 32")
    a("s_branch .kb_set_done")
    a.label(".kb_set_o")
    a(f"s_mul_i32 s37, s70, {24*16384}")
    a(f"s_add_u32 s37, s37, {H_OFF}")
    add64(a, "s80", "s81", "s26", "s27", "s37")
    a(f"s_mov_b32 s82, {24*16384}")
    a("s_mov_b32 s84, s24")
    a("s_mov_b32 s85, s25")
    a(f"s_mov_b32 s86, {1536*1280}")
    a("s_mov_b32 s74, 16384")
    a("s_mov_b32 s75, 24")
    a.label(".kb_set_done")
    a("s_and_b32 s81, s81, 0xffff")
    a("s_mov_b32 s83, 0x20000")
    a("s_and_b32 s85, s85, 0xffff")
    a("s_mov_b32 s87, 0x20000")
    a("s_cmp_ge_u32 s33, 8")
    a("s_cbranch_scc1 .kb_pf")

    a("s_sub_u32 s33, s33, 4")
    a(f"s_mul_i32 s41, s34, {128*1280}")
    a(f"s_add_u32 s41, s41, {XN_OFF}")
    add64(a, "s8", "s9", "s26", "s27", "s41")
    srd(a, 8, "s8", "s9", 128 * 1280)
    a("s_mul_i32 s41, s35, 192")
    a(f"s_mul_i32 s44, s33, {16*3072}")
    a("s_add_u32 s41, s41, s44")
    a(f"s_sub_u32 s45, {640*3072}, s41")
    add64(a, "s12", "s13", "s4", "s5", "s41")
    srd(a, 12, "s12", "s13", "s45")
    add64(a, "s16", "s17", "s6", "s7", "s41")
    srd(a, 16, "s16", "s17", "s45")
    kcontig_voffs(a, [2, 3, 4, 5], 1280, "s33", "v20", "v21")
    for j in range(3):
        a(f"v_add_u32 v20, {64*j}, v1")
        a("v_mul_u32_u24 v21, 171, v20")
        a("v_lshrrev_b32 v21, 11, v21")
        a("v_mul_u32_u24 v22, 12, v21")
        a("v_sub_u32 v22, v20, v22")
        a("v_mul_u32_u24 v21, 3072, v21")
        a(f"v_lshl_add_u32 v{6+j}, v22, 4, v21")
        a("v_xor_b32 v22, 2, v22")
        a(f"v_lshl_add_u32 v{9+j}, v22, 4, v21")
    a("s_lshl_b32 s47, s33, 12")
    a("s_mul_i32 s49, s33, 3072")

    def issue0(g):
        base = ((g + 2) % S0) * SS0
        a(f"s_mov_b32 s44, {g*128}")
        a(f"s_mov_b32 s45, {g*64*3072}")
        for j in range(4):
            a(f"s_add_u32 m0, s47, {base + j*1024}")
            a("s_nop 0")
            a.vm(f"buffer_load_dwordx4 v{2+j}, s[8:11], s44 offen lds", ("k0", g))
            if j < 3:
                a(f"s_add_u32 m0, s49, {base + GOFF + j*1024}")
                a("s_nop 0")
                a.vm(f"buffer_load_dwordx4 v{6+j}, s[12:15], s45 offen lds", ("k0", g))
                a(f"s_add_u32 m0, s49, {base + UOFF + j*1024}")
                a("s_nop 0")
                a.vm(f"buffer_load_dwordx4 v{9+j}, s[16:19], s45 offen lds", ("k0", g))
    a.vq = []
    for g in range(3):
        issue0(g)
    a("s_cmp_ge_u32 s72, 2")
    a("s_cbranch_scc1 .kb_lv_o")
    kcontig_voffs(a, [12, 13, 14, 15], 4096, "s33", "v20", "v21")
    a("s_branch .kb_lv_done")
    a.label(".kb_lv_o")
    a("v_lshl_add_u32 v12, v1, 4, s47")
    for j in range(1, 4):
        a(f"v_add_u32 v{12+j}, {1024*j}, v12")
    a.label(".kb_lv_done")
    a("v_lshrrev_b32 v20, 4, v1")
    a("v_lshlrev_b32 v21, 2, v20")
    a("v_xor_b32 v21, v21, v1")
    a("v_and_b32 v21, 15, v21")
    a("s_lshl_b32 s41, s33, 4")
    a("v_add_u32 v20, s41, v20")
    a("v_mul_u32_u24 v20, 1280, v20")
    a("v_lshl_add_u32 v16, v21, 4, v20")
    a("s_lshl_b32 s41, s71, 8")
    a("v_add_u32 v16, s41, v16")
    for j in range(1, 4):
        a(f"v_add_u32 v{16+j}, {5120*j}, v16")
    a("s_mov_b32 s76, 0")
    a("s_mov_b32 s77, 0")
    for g in range(7):
        a.vwait(("k0", g))
        a("s_barrier")
        issue0(g + 3)

    def issue1(j, half, bflags=""):
        for jj in range(4):
            if "B" in half:
                a(f"s_add_u32 m0, s47, {j*SS1 + jj*1024}")
                a("s_nop 0")
                a.vm(f"buffer_load_dwordx4 v{12+jj}, s[80:83], s76 offen {bflags} lds", ("k1", j))
            if "A" in half:
                a(f"s_add_u32 m0, s47, {j*SS1 + 16384 + jj*1024}")
                a("s_nop 0")
                a.vm(f"buffer_load_dwordx4 v{16+jj}, s[84:87], s77 offen lds", ("k1", j))
        if "B" in half:
            a("s_add_u32 s76, s76, s74")
        if "A" in half:
            a(f"s_add_u32 s77, s77, {64*1280}")

    def steady(pfx, bflags):
        a("s_mov_b32 s46, s47")

        def issue_dyn(tag):
            for jj in range(4):
                a(f"s_add_u32 m0, s46, {jj*1024}")
                a("s_nop 0")
                a.vm(f"buffer_load_dwordx4 v{12+jj}, s[80:83], s76 offen {bflags} lds", tag)
                a(f"s_add_u32 m0, s46, {16384 + jj*1024}")
                a("s_nop 0")
                a.vm(f"buffer_load_dwordx4 v{16+jj}, s[84:87], s77 offen lds", tag)
            a("s_add_u32 s76, s76, s74")
            a(f"s_add_u32 s77, s77, {64*1280}")
            a(f"s_add_u32 s46, s46, {SS1}")
            a(f"s_cmp_ge_u32 s46, {S1*SS1}")
            a(f"s_cselect_b32 s40, {S1*SS1}, 0")
            a("s_sub_u32 s46, s46, s40")
        for j in range(1, 4):
            a.vwait(("k1", j))
            a("s_barrier")
            issue_dyn(("k1", j + 4))
        a("s_sub_u32 s75, s75, 8")
        a.label(f".{pfx}_lloop")
        a("s_waitcnt vmcnt(24)")
        a("s_barrier")
        issue_dyn("x")
        a("s_sub_u32 s75, s75, 1")
        a("s_cmp_lg_u32 s75, 0")
        a(f"s_cbranch_scc1 .{pfx}_lloop")
        for k in range(3, -1, -1):
            a(f"s_waitcnt vmcnt({8*k})")
            a("s_barrier")
        a("s_endpgm")

    a("s_cmp_ge_u32 s72, 2")
    a("s_cbranch_scc1 .kb_l_o")
    vq_save = list(a.vq)
    for g in range(7, 10):
        a.vwait(("k0", g))
        a("s_barrier")
        issue1(g - 7, "AB", cnt)
    a("s_barrier")
    issue1(3, "AB", cnt)
    issue1(4, "AB", cnt)
    a.vwait(("k1", 0))
    a("s_barrier")
    steady("kbp", cnt)
    a.label(".kb_l_o")
    a.vq = vq_save
    a("s_cmp_eq_u32 s72, 3")
    a("s_cselect_b32 s86, 0, s86")
    for g in range(7, 10):
        a.vwait(("k0", g))
        a("s_barrier")
        issue1(g - 7, "A")
    a("s_barrier")
    a("s_cmp_eq_u32 s72, 3")
    a("s_cbranch_scc1 .kb_done")
    issue1(3, "A")
    issue1(4, "A")
    a("s_lshl_b32 s41, s70, 8")
    a(f"s_add_u32 s41, s41, {FLAG_OFF}")
    add64(a, "s52", "s53", "s26", "s27", "s41")
    srd(a, 52, "s52", "s53", 256)
    a("v_lshlrev_b32 v20, 2, v1")
    a("s_mov_b32 s56, 200000")
    a.label(".kb_poll")
    a("buffer_load_dword v21, v20, s[52:55], 0 offen sc1")
    a("s_waitcnt vmcnt(0)")
    a("v_cmp_ne_u32 vcc, 0, v21")
    a("s_sub_u32 s56, s56, 1")
    a("s_cmp_eq_u32 s56, 0")
    a("s_cbranch_scc1 .kb_polled")
    a("s_cmp_eq_u64 vcc, -1")
    a("s_cbranch_scc1 .kb_polled")
    a("s_sleep 2")
    a("s_branch .kb_poll")
    a.label(".kb_polled")
    a.vq = []
    for j in range(5):
        issue1(j, "B", "sc1")
    a.vwait(("k1", 0))
    a("s_barrier")
    steady("kbo", "sc1")

    a.label(".kb_pf")
    a("s_load_dwordx2 s[8:9], s[0:1], 0")
    a("s_load_dwordx4 s[12:15], s[0:1], 24")
    a("v_and_b32 v2, 31, v1")
    a("s_mul_i32 s41, s71, 26")
    a("v_add_u32 v2, s41, v2")
    a("v_lshlrev_b32 v2, 12, v2")
    a("v_lshrrev_b32 v3, 5, v1")
    a("v_lshl_add_u32 v2, v3, 7, v2")
    a("v_min_u32 v3, 39, v1")
    a("s_mul_i32 s41, s31, 5120")
    a("v_lshl_add_u32 v3, v3, 7, s41")
    a("s_mul_i32 s41, s31, 25600")
    a("v_lshl_add_u32 v40, v1, 7, s41")
    for j in range(1, 4):
        a(f"v_add_u32 v{40+j}, {8192*j}, v40")
    a(f"v_min_u32 v43, {640*1280-128}, v43")
    a("s_mul_i32 s41, s31, 10240")
    a("v_lshl_add_u32 v44, v1, 7, s41")
    a("v_add_u32 v45, 8192, v44")
    a(f"v_min_u32 v45, {256*1280-128}, v45")
    a("s_waitcnt lgkmcnt(0)")
    a(f"s_mul_i32 s41, s30, {256*1280}")
    add64(a, "s8", "s9", "s8", "s9", "s41")
    srd(a, 8, "s8", "s9", 256 * 1280)
    srd(a, 16, "s14", "s15", 640 * 1280)
    srd(a, 12, "s12", "s13", 640 * 1280)
    pfn = opt.get("pf_nt", "nt")
    xfn = opt.get("pf_xn", "nt")
    k2ops = []
    for j in range(4):
        k2ops.append((f"v{40+j}", 12, 0, "nt"))
        k2ops.append((f"v{40+j}", 16, 0, "nt"))
    for j in range(2):
        k2ops.append((f"v{44+j}", 8, 0, "nt"))
    if not opt.get("pf_k2", 1):
        k2ops = []
    cops = [("v2", 80, p * 256, pfn) for p in range(16)]
    xops = [("v3", 84, p * 2 * 81920, xfn) for p in range(16)]
    B0 = opt.get("pf_b0", 1)

    def run(ops, nticks, burst):
        ops = list(ops)
        n = [0]

        def one():
            if ops:
                v, sd, so, fl = ops.pop(0)
                a(f"s_mov_b32 s44, {so}")
                a(f"buffer_load_dword v{8 + (n[0] % 32)}, {v}, {sr(sd,4)}, s44 offen {fl}")
                n[0] += 1
        for _ in range(burst):
            one()
        for t in range(nticks):
            if not ops:
                break
            a("s_barrier")
            one()
        while ops:
            one()
        a("s_endpgm")
    if not opt.get("pf", 1):
        a("s_endpgm")
    a("s_cmp_ge_u32 s72, 2")
    a("s_cbranch_scc1 .kb_pf_o")
    inter = []
    for p in range(16):
        inter += [cops[p], xops[p]]
    run(inter + k2ops, 42, 2 * B0)
    a.label(".kb_pf_o")
    inter = []
    k2o = list(k2ops)
    for p in range(12):
        inter.append((xops[p][0], xops[p][1], xops[p][2], "nt"))
        if p >= 2 and k2o:
            inter.append(k2o.pop(0))
    run(inter + k2o, 34, B0)
    a.label(".kb_idle")
    stamp(a, opt, 1, 3, 152)
    a.label(".kb_done")
    a("s_endpgm")
    nv = 160 if opt.get('stamps') else 152
    return name, a.text(), kernel_desc(name, nv, nv), f"; @launch kernel={name} grid=(256,1,1) block=(576,1,1) lds={S1*SS1}"


def gen_k2(opt):
    a = Asm()
    name = "k2_kernel"
    S = 16
    SS = 10240
    NST = 20
    NL = 4
    a.raw(kernel_header(name))
    a("s_cmp_ge_u32 s2, 256")
    a("s_cbranch_scc1 .k2_done")
    a("s_load_dwordx2 s[24:25], s[0:1], 0")
    a("s_load_dwordx4 s[4:7], s[0:1], 24")
    a("s_load_dwordx2 s[28:29], s[0:1], 72")
    a("s_load_dwordx2 s[26:27], s[0:1], 88")
    a("v_and_b32 v1, 63, v0")
    a("v_lshrrev_b32 v2, 6, v0")
    a("s_and_b32 s30, s2, 7")
    a("s_lshr_b32 s31, s2, 3")
    a("s_lshl_b32 s34, s30, 2")
    a("s_and_b32 s35, s31, 3")
    a("s_add_u32 s34, s34, s35")
    a("s_lshr_b32 s35, s31, 2")
    a("v_readfirstlane_b32 s33, v2")
    a("s_cmp_ge_u32 s33, 4")
    a("s_cbranch_scc1 .k2_loader")

    bA = [[2 + g * 2 + kb for kb in range(2)] for g in range(3)]
    xo = 8
    fB = [12 + 4 * i for i in range(40)]
    fA = [[172 + st * 20 + e * 4 for e in range(5)] for st in range(2)]
    acc = [212 + e * 4 for e in range(5)]
    xr = [232 + 2 * e for e in range(5)]
    gr = [242 + 2 * e for e in range(5)]
    NV = 256
    a("s_lshl_b32 s41, s34, 2")
    a("s_add_u32 s41, s41, s33")
    a("s_mul_i32 s44, s41, 61440")
    a(f"s_add_u32 s44, s44, {PQG_OFF}")
    a("v_lshlrev_b32 v9, 4, v1")
    a("s_waitcnt lgkmcnt(0)")
    add64(a, "s16", "s17", "s26", "s27", "s44")
    srd(a, 16, "s16", "s17", 61440)
    stamp(a, opt, 2, 0, 172)
    pqn = opt.get("k2_pq", "")
    for i in range(40):
        so = "0" if i < 4 else f"s{50 + i // 4}"
        if i % 4 == 0 and i:
            a(f"s_mov_b32 s{50 + i // 4}, {i*1024}")
        a.vm(f"buffer_load_dwordx4 {vr(fB[i],4)}, v9, s[16:19], {so} offen offset:{(i % 4)*1024} {pqn}", ("B", i))
        if i == 3:
            a("v_and_b32 v11, 15, v1")
            a("v_lshrrev_b32 v10, 4, v1")
            a("s_mul_i32 s44, s35, 80")
            a(f"s_mov_b32 s45, {40*1024}")
            a("v_lshl_add_u32 v2, v10, 2, s44")
            for e in range(5):
                g = 3 + (e & 1)
                a(f"v_lshrrev_b32 v{g}, 3, v2")
                a(f"v_lshlrev_b32 v{g}, 8, v{g}")
                a(f"v_lshl_add_u32 v{g}, v11, 4, v{g}")
                a("v_and_b32 v5, 4, v2")
                a(f"v_lshl_add_u32 v{g}, v5, 1, v{g}")
                a.vm(f"buffer_load_dwordx2 {vr(gr[e],2)}, v{g}, s[16:19], s45 offen {pqn}", "g")
                a("v_add_u32 v2, 16, v2")
    a(f"s_mul_i32 s41, s41, {16*1280}")
    a("s_mul_i32 s44, s35, 160")
    a("s_add_u32 s41, s41, s44")
    add64(a, "s8", "s9", "s24", "s25", "s41")
    srd(a, 8, "s8", "s9", 15 * 1280 + 160)
    add64(a, "s12", "s13", "s28", "s29", "s41")
    srd(a, 12, "s12", "s13", 15 * 1280 + 160)
    a(f"v_mul_u32_u24 v{xo}, 1280, v11")
    a(f"v_lshl_add_u32 v{xo}, v10, 3, v{xo}")
    for e in range(5):
        a.vm(f"buffer_load_dwordx2 {vr(xr[e],2)}, v{xo}, s[8:11], 0 offen offset:{32*e}", "x")
    a("v_lshrrev_b32 v9, 1, v11")
    a("v_xor_b32 v9, v9, v10")
    a("v_lshlrev_b32 v11, 7, v11")
    for g in range(3):
        for kb in range(2):
            a(f"v_xor_b32 v{bA[g][kb]}, {4*kb}, v9")
            a(f"v_lshl_add_u32 v{bA[g][kb]}, v{bA[g][kb]}, 4, v11")
            if g:
                a(f"v_add_u32 v{bA[g][kb]}, {g*6*SS}, v{bA[g][kb]}")
    for e in range(5):
        for r in range(4):
            a(f"v_mov_b32 v{acc[e]+r}, 0")
    a.vwait("g")
    for e in range(5):
        for p in range(2):
            r = gr[e] + p
            a(f"v_lshlrev_b32 v9, 16, v{r}")
            a(f"v_and_b32 v10, 0xffff0000, v{r}")
            a(f"v_mul_f32 v11, {f32(-LOG2E)}, v9")
            a(f"v_mul_f32 v252, {f32(-LOG2E)}, v10")
            a("v_exp_f32 v11, v11")
            a("v_exp_f32 v252, v252")
            a("s_nop 0")
            a("v_add_f32 v11, 1.0, v11")
            a("v_add_f32 v252, 1.0, v252")
            a("v_rcp_f32 v11, v11")
            a("v_rcp_f32 v252, v252")
            a("s_nop 0")
            a("v_mul_f32 v9, v9, v11")
            a("v_mul_f32 v10, v10, v252")
            a(f"v_cvt_pk_bf16_f32 v{r}, v9, v10")

    def reads(st, stage, kb):
        slot = stage % S
        g, so = slot // 6, (slot % 6) * SS
        return [(f"ds_read_b128 {vr(fA[st][e],4)}, v{bA[g][kb]} offset:{so+e*2048}", ("A", st, e)) for e in range(5)]

    def step(st, i, nxt, barrier=False):
        rd = list(nxt)
        a.vwait(("B", i))
        for e in range(5):
            a.lwait(("A", st, e))
            c = vr(acc[e], 4)
            a(f"v_mfma_f32_16x16x32_bf16 {c}, {vr(fA[st][e],4)}, {vr(fB[i],4)}, {c}")
            if e == 0 and barrier:
                a.lwait_all()
                a("s_barrier")
            for _ in range(2):
                if rd:
                    t, tag = rd.pop(0)
                    a.lds(t, tag)
        assert not rd
    BP = opt.get("k2_bp", 2)
    a("s_barrier")
    for t, tag in reads(0, 0, 0):
        a.lds(t, tag)
    for stg in range(NST):
        step(0, 2 * stg, reads(1, stg, 1))
        if stg < NST - 1:
            step(1, 2 * stg + 1, reads(0, stg + 1, 0), barrier=((stg + 1) % BP == 0))
        else:
            step(1, 2 * stg + 1, [])
    stamp(a, opt, 2, 1, 12)
    a("s_nop 7")
    a.vwait_all()
    for e in range(5):
        for p in range(2):
            y0, y1 = acc[e] + 2 * p, acc[e] + 2 * p + 1
            a(f"v_cvt_pk_bf16_f32 v2, v{y0}, v{y1}")
            a(f"v_lshlrev_b32 v{y0}, 16, v2")
            a(f"v_and_b32 v{y1}, 0xffff0000, v2")
            a(f"v_lshlrev_b32 v3, 16, v{gr[e]+p}")
            a(f"v_and_b32 v4, 0xffff0000, v{gr[e]+p}")
            a(f"v_mul_f32 v{y0}, v{y0}, v3")
            a(f"v_mul_f32 v{y1}, v{y1}, v4")
            a(f"v_cvt_pk_bf16_f32 v2, v{y0}, v{y1}")
            a(f"v_lshlrev_b32 v{y0}, 16, v2")
            a(f"v_and_b32 v{y1}, 0xffff0000, v2")
            a(f"v_lshlrev_b32 v3, 16, v{xr[e]+p}")
            a(f"v_and_b32 v4, 0xffff0000, v{xr[e]+p}")
            a(f"v_add_f32 v{y0}, v{y0}, v3")
            a(f"v_add_f32 v{y1}, v{y1}, v4")
            a(f"v_cvt_pk_bf16_f32 v{xr[e]+p}, v{y0}, v{y1}")
        a(f"buffer_store_dwordx2 {vr(xr[e],2)}, v{xo}, s[12:15], 0 offen offset:{32*e}")
    stamp(a, opt, 2, 2, 12)
    a("s_endpgm")

    a.label(".k2_loader")
    a("s_sub_u32 s33, s33, 4")
    a(f"s_mul_i32 s41, s35, {80*1280}")
    a("v_lshrrev_b32 v10, 3, v1")
    a("v_mul_u32_u24 v10, 1280, v10")
    a("v_lshrrev_b32 v11, 4, v1")
    a("v_xor_b32 v11, v11, v1")
    a("v_and_b32 v11, 7, v11")
    a("v_lshl_add_u32 v2, v11, 4, v10")
    a("v_xor_b32 v11, 4, v11")
    a("v_lshl_add_u32 v3, v11, 4, v10")
    a("s_waitcnt lgkmcnt(0)")
    add64(a, "s8", "s9", "s4", "s5", "s41")
    srd(a, 8, "s8", "s9", 80 * 1280)
    add64(a, "s12", "s13", "s6", "s7", "s41")
    srd(a, 12, "s12", "s13", 80 * 1280)
    for w in range(NL):
        if w < NL - 1:
            a(f"s_cmp_lg_u32 s33, {w}")
            a(f"s_cbranch_scc1 .k2_ld{w+1}")
        a.vq = []

        def issue(stg):
            slot = stg % S
            for j in range(10):
                if (stg * 10 + j) % NL != w:
                    continue
                a(f"s_mov_b32 m0, {slot*SS + j*1024}")
                a(f"s_mov_b32 s44, {j*8*1280 + (stg % 10)*128}")
                sd = 8 if stg < 10 else 12
                a.vm(f"buffer_load_dwordx4 v{2+(j&1)}, {sr(sd,4)}, s44 offen lds", stg)
        for stg in range(S):
            issue(stg)
        nxt = S
        for stg in range(0, NST, BP):
            a.vwait(*range(stg, stg + BP))
            a("s_barrier")
            while nxt < NST and nxt - S < stg:
                issue(nxt)
                nxt += 1
        a("s_endpgm")
        if w < NL - 1:
            a.label(f".k2_ld{w+1}")
    a.label(".k2_done")
    a("s_endpgm")
    return name, a.text(), kernel_desc(name, NV, NV), f"; @launch kernel={name} grid=(256,1,1) block=({256+64*NL},1,1) lds={S*SS}"


def gen_probe(opt):
    a = Asm()
    name = "probe_kernel"
    (ka, sa, opa), (kb_, sb, opb), mul = opt["probe"]
    a.raw(kernel_header(name))
    a("s_cmp_ge_u32 s2, 1")
    a("s_cbranch_scc1 .pr_done")
    a("s_load_dwordx2 s[4:5], s[0:1], 88")
    a("v_lshlrev_b32 v1, 10, v0")
    a("s_waitcnt lgkmcnt(0)")
    add64(a, "s4", "s5", "s4", "s5", STAMP_OFF)
    srd(a, 4, "s4", "s5", 0x2000000)
    for i in range(4):
        a(f"s_mov_b32 s10, {ka*512*1024 + sa*16 + i*65536}")
        a(f"buffer_load_dwordx4 v[{4+4*i}:{7+4*i}], v1, s[4:7], s10 offen sc1")
        a(f"s_mov_b32 s10, {kb_*512*1024 + sb*16 + i*65536}")
        a(f"buffer_load_dwordx4 v[{20+4*i}:{23+4*i}], v1, s[4:7], s10 offen sc1")
    a("s_waitcnt vmcnt(0)")
    if opa == "xcc":
        a("v_and_b32 v2, 7, v0")
        a("s_mov_b32 s20, 0")
        for i in range(4):
            a(f"v_and_b32 v3, 15, v{7+4*i}")
            a("v_cmp_ne_u32 vcc, v2, v3")
            a("s_bcnt1_i32_b64 s21, vcc")
            a("s_add_u32 s20, s20, s21")
    elif opa == "clk":
        a("v_sub_u32 v2, v22, v6")
        a("v_sub_u32 v3, v20, v4")
        a("v_cvt_f32_u32 v2, v2")
        a("v_cvt_f32_u32 v3, v3")
        a("v_rcp_f32 v3, v3")
        a("s_nop 1")
        a("v_mul_f32 v2, v2, v3")
        a(f"v_mul_f32 v2, {f32(100.0)}, v2")
        a("v_cvt_u32_f32 v2, v2")
        a("s_nop 1")
        a("v_readfirstlane_b32 s20, v2")
    else:
        a("v_readfirstlane_b32 s12, v4")
        a("s_sub_u32 s12, s12, 0x100000")
        for base, op, dst in ((4, opa, "s21"), (20, opb, "s22")):
            for i in range(4):
                a(f"v_subrev_u32 v{base+4*i}, s12, v{base+4*i}")
            for i in range(1, 4):
                a(f"v_{op}_u32 v{base}, v{base}, v{base+4*i}")
            a("s_nop 1")
            a(f"v_readfirstlane_b32 {dst}, v{base}")
            for l in range(1, 64):
                a(f"v_readlane_b32 s13, v{base}, {l}")
                a(f"s_{op}_u32 {dst}, {dst}, s13")
        a("s_sub_u32 s20, s22, s21")
    a("s_min_u32 s20, s20, 10000")
    a(f"s_mul_i32 s20, s20, {mul}")
    a("s_memrealtime s[14:15]")
    a("s_waitcnt lgkmcnt(0)")
    a.label(".pr_loop")
    a("s_memrealtime s[16:17]")
    a("s_waitcnt lgkmcnt(0)")
    a("s_sub_u32 s16, s16, s14")
    a("s_cmp_lt_u32 s16, s20")
    a("s_cbranch_scc1 .pr_loop")
    a.label(".pr_done")
    a("s_endpgm")
    return name, a.text(), kernel_desc(name, 48, 48), f"; @launch kernel={name} grid=(1,1,1) block=(64,1,1) lds=0"


def build(opt, gens=None):
    K1.OPT.clear(); K1.OPT.update(opt)
    gens = gens or [gen_ln, gen_kb, gen_k2]
    if opt.get("probe"):
        gens = gens + [gen_probe]
    ks = [g(opt) for g in gens]
    out = HEADER
    for k in ks:
        out += k[3] + "\n"
    out += '.amdgcn_target "amdgcn-amd-amdhsa--gfx950"\n'
    for k in ks:
        out += k[1]
    out += '.section .rodata,"a"\n'
    for k in ks:
        out += k[2]
    return out


if __name__ == "__main__":
    import sys, json
    opt = json.loads(sys.argv[2]) if len(sys.argv) > 2 else {}
    open(sys.argv[1], "w").write(build(opt))
```

```python
from asmlib import *
from kernels import srd, add64, stamp, HEADER
import sys, json
import numpy as np

def pats():
    l = np.arange(64); q = l >> 4; r = l & 15; i = l & 15
    P = []
    P.append(("lin128", "b128", l * 16))
    for kh in range(2):
        P.append((f"kc_f=r>>1 kh{kh}", "b128", r * 128 + (((4 * kh + q) ^ ((r >> 1) & 7)) * 16)))
        P.append((f"kc_f=r&7 kh{kh}", "b128", r * 128 + (((4 * kh + q) ^ (r & 7)) * 16)))
    P.append(("kc_noswz", "b128", r * 128 + q * 16))
    P.append(("lin64tr", "tr", l * 8))
    for pitch in (192, 320):
        for sw in (0, 1):
            for fb in (0, 1):
                P.append((f"tr p{pitch} sw{sw} fb{fb}", "tr", (8 * q + (i >> 2)) * pitch + ((fb ^ (sw * (q & 1))) * 32) + (i & 3) * 8))
    for pitch in (192, 320):
        P.append((f"tr p{pitch} sw(q>>1)", "tr", (8 * q + (i >> 2)) * pitch + (((q >> 1) & 1) * 32) + (i & 3) * 8))
    P.append(("bcast128 q", "b128", q * 16))
    P.append(("b64 tok", "b64", r * 8))
    return P

def gen(idx, kind):
    a = Asm()
    name = f"ml{idx}_kernel"
    a.raw(kernel_header(name))
    a("s_cmp_ge_u32 s2, 1")
    a(f"s_cbranch_scc1 .ml{idx}_done")
    a("s_load_dwordx2 s[8:9], s[0:1], 88")
    a("v_and_b32 v1, 63, v0")
    a("v_lshlrev_b32 v1, 2, v1")
    a("s_waitcnt lgkmcnt(0)")
    add64(a, "s8", "s9", "s8", "s9", (64 << 20) + idx * 256)
    srd(a, 8, "s8", "s9", 256)
    a("buffer_load_dword v2, v1, s[8:11], 0 offen")
    a("s_waitcnt vmcnt(0)")
    a("s_barrier")
    stamp(a, {"stamps": 1}, idx, 0)
    a("s_mov_b32 s46, 16")
    a.label(f".ml{idx}_loop")
    for j in range(32):
        if kind == "b128":
            a(f"ds_read_b128 {vr(8+4*(j%12),4)}, v2 offset:{(j%8)*2048}")
        elif kind == "b64":
            a(f"ds_read_b64 {vr(8+4*(j%12),2)}, v2 offset:{(j%8)*2048}")
        else:
            a(f"ds_read_b64_tr_b16 {vr(8+4*(j%12),2)}, v2 offset:{(j%8)*2048}")
        if j % 4 == 3:
            a("s_waitcnt lgkmcnt(8)")
    a("s_sub_u32 s46, s46, 1")
    a("s_cmp_lg_u32 s46, 0")
    a(f"s_cbranch_scc1 .ml{idx}_loop")
    a("s_waitcnt lgkmcnt(0)")
    stamp(a, {"stamps": 1}, idx, 1)
    a.label(f".ml{idx}_done")
    a("s_endpgm")
    return name, a.text(), kernel_desc(name, 256, 256), f"; @launch kernel={name} grid=(1,1,1) block=(256,1,1) lds=65536"

if __name__ == "__main__":
    P = pats()
    ks = [gen(i, p[1]) for i, p in enumerate(P)]
    out = HEADER
    for k in ks:
        out += k[3] + "\n"
    out += '.amdgcn_target "amdgcn-amd-amdhsa--gfx950"\n'
    for k in ks:
        out += k[1]
    out += '.section .rodata,"a"\n'
    for k in ks:
        out += k[2]
    open(sys.argv[1], "w").write(out)
    json.dump([(p[0], p[1], [int(x) for x in p[2]]) for p in P], open(sys.argv[2], "w"))
```

```python
from asmlib import *
import kernels as K1
from kernels import (f32, LOG2E, srd, add64, stamp, rn_bf16, half_sum, kcontig_voffs, kcontig_bases,
                     pack_store_prep, XN_OFF, H_OFF, PQG_OFF, STAMP_OFF, HEADER)

FLAG_OFF = 3 << 20
OPT = {}


def gen_ln(opt):
    a = Asm()
    name = "ln_kernel"
    nt = opt.get("ln_nt", "nt")
    a.raw(kernel_header(name))
    a("s_cmp_ge_u32 s2, 256")
    a("s_cbranch_scc1 .ln_done")
    a("s_load_dwordx2 s[4:5], s[0:1], 0")
    a("s_load_dwordx2 s[8:9], s[0:1], 88")
    a("s_load_dwordx4 s[12:15], s[0:1], 48")
    stamp(a, opt, 0, 0)
    a("v_lshrrev_b32 v1, 5, v0")
    a("v_and_b32 v2, 31, v0")
    a("s_bfe_u32 s3, s2, 0x20001")
    a("s_lshl_b32 s3, s3, 9")
    a("s_lshr_b32 s30, s2, 3")
    a("s_lshl_b32 s31, s30, 4")
    a("s_add_u32 s3, s3, s31")
    a("v_add_u32 v1, s3, v1")
    a("v_mul_u32_u24 v1, 1280, v1")
    a("v_lshl_add_u32 v1, v2, 3, v1")
    a("v_lshrrev_b32 v44, 6, v0")
    a("v_and_b32 v45, 63, v0")
    a("v_min_u32 v45, 59, v45")
    a("v_readfirstlane_b32 s33, v44")
    a("v_mul_u32_u24 v46, 43, v45")
    a("v_lshrrev_b32 v46, 9, v46")
    a("v_mul_u32_u24 v47, 12, v46")
    a("v_sub_u32 v47, v45, v47")
    a("v_mul_u32_u24 v46, 3072, v46")
    a("v_lshl_add_u32 v46, v47, 7, v46")
    a("s_mul_i32 s34, s30, 20")
    a("s_lshr_b32 s35, s33, 1")
    a("s_mul_i32 s35, s35, 5")
    a("s_add_u32 s34, s34, s35")
    a("s_mul_i32 s34, s34, 3072")
    a("s_and_b32 s35, s2, 1")
    a("s_mul_i32 s35, s35, 1536")
    a("s_add_u32 s34, s34, s35")
    a("s_waitcnt lgkmcnt(0)")
    srd(a, 4, "s4", "s5", 2048 * 1280)
    for i in range(5):
        a(f"buffer_load_dwordx2 v[{4+2*i}:{5+2*i}], v1, s[4:7], 0 offen offset:{256*i} {nt}")
    a("s_and_b32 s35, s33, 1")
    a("s_cmp_eq_u32 s35, 0")
    a("s_cselect_b32 s16, s12, s14")
    a("s_cselect_b32 s17, s13, s15")
    srd(a, 16, "s16", "s17", 640 * 3072)
    if opt.get("ln_pf", 1):
        a(f"buffer_load_dword v47, v46, s[16:19], s34 offen {opt.get('ln_pfnt','nt')}")
    a("s_lshl_b32 s35, s2, 4")
    a(f"s_add_u32 s35, s35, {FLAG_OFF}")
    add64(a, "s20", "s21", "s8", "s9", "s35")
    srd(a, 20, "s20", "s21", 16)
    srd(a, 8, "s8", "s9", 2048 * 1280)
    a("s_cmp_lg_u32 s33, 0")
    a("s_cbranch_scc1 .ln_noflag")
    a("v_lshlrev_b32 v45, 2, v0")
    a("v_mov_b32 v44, 0")
    a("s_mov_b64 exec, 15")
    a("buffer_store_dword v44, v45, s[20:23], 0 offen")
    a("s_mov_b64 exec, -1")
    a("s_waitcnt vmcnt(2)" if opt.get("ln_pf", 1) else "s_waitcnt vmcnt(1)")
    a("s_branch .ln_go")
    a.label(".ln_noflag")
    a("s_waitcnt vmcnt(1)" if opt.get("ln_pf", 1) else "s_waitcnt vmcnt(0)")
    a.label(".ln_go")
    for i in range(10):
        a(f"v_lshlrev_b32 v{20+2*i}, 16, v{4+i}")
        a(f"v_and_b32 v{21+2*i}, 0xffff0000, v{4+i}")
    a("v_add_f32 v2, v20, v21")
    for i in range(2, 20):
        a(f"v_add_f32 v2, v2, v{20+i}")
    half_sum(a, "v2", "v3")
    a(f"v_mul_f32 v2, {f32(1.0/640)}, v2")
    a("v_sub_f32 v40, v20, v2")
    a("v_mul_f32 v41, v40, v40")
    for i in range(1, 20):
        a(f"v_sub_f32 v40, v{20+i}, v2")
        a("v_fmac_f32 v41, v40, v40")
    half_sum(a, "v41", "v3")
    a(f"v_mul_f32 v41, {f32(1.0/640)}, v41")
    rn_bf16(a, "v2")
    rn_bf16(a, "v41")
    a(f"v_add_f32 v41, {f32(1e-5)}, v41")
    rn_bf16(a, "v41")
    a("v_sqrt_f32 v41, v41")
    a("s_nop 0")
    rn_bf16(a, "v41")
    a("v_rcp_f32 v42, v41")
    a("s_nop 0")
    a("v_fma_f32 v43, -v41, v42, 1.0")
    a("v_fma_f32 v42, v43, v42, v42")
    for i in range(10):
        lo, hi = 20 + 2 * i, 21 + 2 * i
        a(f"v_sub_f32 v{lo}, v{lo}, v2")
        a(f"v_sub_f32 v{hi}, v{hi}, v2")
        a(f"v_cvt_pk_bf16_f32 v{4+i}, v{lo}, v{hi}")
        a(f"v_lshlrev_b32 v{lo}, 16, v{4+i}")
        a(f"v_and_b32 v{hi}, 0xffff0000, v{4+i}")
        a(f"v_mul_f32 v{lo}, v{lo}, v42")
        a(f"v_mul_f32 v{hi}, v{hi}, v42")
        a(f"v_cvt_pk_bf16_f32 v{4+i}, v{lo}, v{hi}")
    for i in range(5):
        a(f"buffer_store_dwordx2 v[{4+2*i}:{5+2*i}], v1, s[8:11], 0 offen offset:{256*i} {opt.get('xn_st','')}")
    stamp(a, opt, 0, 1)
    a.label(".ln_done")
    a("s_endpgm")
    nv = 256 if opt.get("stamps") else 48
    return name, a.text(), kernel_desc(name, nv, nv), f"; @launch kernel={name} grid=(256,1,1) block=(512,1,1) lds=0"


class Core(K1.Core):
    def mainloop2(self, s_n, s_slot, s_delta, s_ss, slot0, last_barrier, hook=None, st=None):
        a = self.a
        for i in range(self.NA * 2 * 16):
            a(f"v_mov_b32 v{self.acc0+i}, 0")
        a(f"s_mov_b32 {s_slot}, {slot0}")
        a(f"s_mov_b32 {s_ss}, {self.SS}")
        a(f"s_sub_u32 {s_n}, {s_n}, 1")
        a("s_barrier")
        if st:
            st()
        for t, tag in self.reads(0, 0):
            a.lds(t, tag)
        loop = f".{self.pfx}_cloop"
        a.label(loop)
        upd = lambda r: f"v_add_u32 v{r}, {s_delta}, v{r}"
        sal = [f"s_add_u32 {s_slot}, {s_slot}, 1",
               f"s_cmp_eq_u32 {s_slot}, {self.S}",
               f"s_cselect_b32 {s_delta}, {(-(self.S-1)*self.SS) & 0xffffffff}, {s_ss}",
               f"s_cselect_b32 {s_slot}, 0, {s_slot}",
               f"s_sub_u32 {s_n}, {s_n}, 1"]
        self.step(0, self.reads(1, 1), sal)
        self.step(1, self.reads(0, 2), [upd(self.baseB[0]), upd(self.baseB[1])])
        self.step(0, self.reads(1, 3), [upd(self.baseB[2])] + [upd(r) for r in self.baseA])
        if hook:
            hook(a)
        self.step(1, self.reads(0, 0), [upd(self.baseB[3]), f"s_cmp_lg_u32 {s_n}, 0"], barrier_after_first=True)
        a(f"s_cbranch_scc1 {loop}")
        self.step(0, self.reads(1, 1), [])
        self.step(1, self.reads(0, 2), [])
        self.step(0, self.reads(1, 3), [])
        self.step(1, [], [], barrier_after_first=last_barrier)


class AsmND(Asm):
    def vm(self, s, tag):
        if " lds" in s and any(k in s for k in self.skip):
            return
        super().vm(s, tag)


def gen_kb(opt):
    a = AsmND()
    a.skip = opt.get("skip", [])
    name = "kb_kernel"
    S0, SS0 = 4, 40960
    GOFF, UOFF = 16384, 28672
    S1, SS1 = 5, 32768
    cnt = opt.get("c_nt", "")
    a.raw(kernel_header(name))
    a("s_cmp_ge_u32 s2, 256")
    a("s_cbranch_scc1 .kb_done")
    a("s_load_dwordx4 s[64:67], s[0:1], 8")
    a("s_load_dwordx4 s[4:7], s[0:1], 48")
    a("s_load_dwordx2 s[24:25], s[0:1], 64")
    a("s_load_dwordx2 s[26:27], s[0:1], 88")
    stamp(a, opt, 1, 0, 152)
    a("v_and_b32 v1, 63, v0")
    a("v_lshrrev_b32 v2, 6, v0")
    a("s_and_b32 s30, s2, 7")
    a("s_lshr_b32 s31, s2, 3")
    a("s_lshr_b32 s34, s30, 1")
    a("s_lshl_b32 s34, s34, 2")
    a("s_and_b32 s35, s31, 3")
    a("s_add_u32 s34, s34, s35")
    a("s_and_b32 s35, s30, 1")
    a("s_lshl_b32 s35, s35, 3")
    a("s_lshr_b32 s32, s31, 2")
    a("s_add_u32 s35, s35, s32")
    a("v_readfirstlane_b32 s33, v2")
    a("s_lshl_b32 s32, s30, 5")
    a("s_add_u32 s32, s32, s31")
    a("s_sub_u32 s36, s30, 5")
    a("s_mul_i32 s36, s36, 27")
    a("s_add_u32 s36, s36, s31")
    a("s_add_u32 s36, s36, 160")
    a("s_cmp_ge_u32 s31, 27")
    a("s_cselect_b32 s36, 240, s36")
    a("s_cmp_lt_u32 s30, 5")
    a("s_cselect_b32 s32, s32, s36")
    a(f"s_mul_hi_u32 s70, s32, {(2**32 + 4)//5}")
    a("s_mul_i32 s71, s70, 5")
    a("s_sub_u32 s71, s32, s71")
    a("s_lshr_b32 s72, s70, 4")
    a("s_and_b32 s70, s70, 15")
    a("s_waitcnt lgkmcnt(0)")
    a("s_cmp_ge_u32 s33, 4")
    a("s_cbranch_scc1 .kb_noncons")

    core = Core(a, 3, SS0, S0, lambda s, q: (16 * s + 4 * q) * 192, "k0")
    a("s_and_b32 s38, s33, 1")
    a("s_lshr_b32 s39, s33, 1")
    kcontig_bases(a, core, "s38", "v10", "v11")
    for s in range(4):
        a(f"v_add_u32 v{core.baseB[s]}, {2*SS0}, v{core.baseB[s]}")
    a("v_lshrrev_b32 v10, 5, v1")
    a("v_lshlrev_b32 v10, 3, v10")
    a("v_bfe_u32 v11, v1, 2, 2")
    a("v_add_u32 v10, v10, v11")
    a("v_mul_u32_u24 v10, 192, v10")
    a("v_and_b32 v11, 3, v1")
    a("v_lshl_add_u32 v10, v11, 3, v10")
    a("v_bfe_u32 v11, v1, 4, 1")
    a(f"v_mul_u32_u24 v{core.baseA[0]}, {UOFF-GOFF}, v11")
    a(f"v_add_u32 v10, v10, v{core.baseA[0]}")
    a(f"v_add_u32 v10, {GOFF+2*SS0}, v10")
    a("s_mul_i32 s41, s39, 3")
    for mm in range(3):
        a(f"v_xor_b32 v{core.baseA[mm]}, s41, v11")
        a(f"v_lshl_add_u32 v{core.baseA[mm]}, v{core.baseA[mm]}, 5, v10")
        a("s_add_u32 s41, s41, 1")
    a(f"s_mul_i32 s41, s34, {24*16384}")
    a("s_lshl_b32 s44, s38, 13")
    a("s_add_u32 s41, s41, s44")
    a(f"s_add_u32 s41, s41, {H_OFF}")
    add64(a, "s20", "s21", "s26", "s27", "s41")
    srd(a, 20, "s20", "s21", 24 * 16384)
    a("s_mul_i32 s41, s35, 6")
    a("s_mul_i32 s44, s39, 3")
    a("s_add_u32 s41, s41, s44")
    for mm in range(3):
        a(f"s_lshr_b32 s{46+mm}, s41, 2")
        a(f"s_lshl_b32 s{46+mm}, s{46+mm}, 14")
        a("s_and_b32 s44, s41, 3")
        a("s_lshl_b32 s44, s44, 10")
        a(f"s_add_u32 s{46+mm}, s{46+mm}, s44")
        a("s_add_u32 s41, s41, 1")
    a("s_lshl_b32 s41, s34, 8")
    a("s_lshl_b32 s44, s35, 4")
    a("s_add_u32 s41, s41, s44")
    a("s_lshl_b32 s44, s33, 2")
    a("s_add_u32 s41, s41, s44")
    a(f"s_add_u32 s41, s41, {FLAG_OFF}")
    add64(a, "s52", "s53", "s26", "s27", "s41")
    srd(a, 52, "s52", "s53", 4)
    a("s_mov_b32 s18, 10")
    core.mainloop2("s18", "s42", "s43", "s60", 2, True, st=lambda: stamp(a, opt, 3, 0, 152))
    stamp(a, opt, 1, 1, 152)
    c1 = -2.0 * 0.7978845608028654 * LOG2E
    c2 = c1 * 0.044715
    a("v_lshlrev_b32 v2, 4, v1")
    a("v_add_u32 v3, 4096, v2")
    a(f"v_mov_b32 v4, {f32(c1)}")
    a(f"v_mov_b32 v5, {f32(c1)}")
    a(f"v_mov_b32 v6, {f32(c2)}")
    a(f"v_mov_b32 v7, {f32(c2)}")
    a("v_mov_b32 v8, 1.0")
    a("v_mov_b32 v9, 1.0")
    a("s_nop 7")
    T = [12, 14, 16, 18]
    for m in range(3):
        for b in range(2):
            base = core.acc(m, b)
            G = [vr(base + 2 * i, 2) for i in range(4)]
            U = [vr(base + 8 + 2 * i, 2) for i in range(4)]
            for i in range(4):
                a(f"v_pk_mul_f32 {vr(T[i],2)}, {G[i]}, {G[i]}")
            for i in range(4):
                a(f"v_pk_fma_f32 {vr(T[i],2)}, {vr(T[i],2)}, v[6:7], v[4:5]")
            for i in range(4):
                a(f"v_pk_mul_f32 {vr(T[i],2)}, {vr(T[i],2)}, {G[i]}")
            for i in range(4):
                a(f"v_exp_f32 v{T[i]}, v{T[i]}")
                a(f"v_exp_f32 v{T[i]+1}, v{T[i]+1}")
            for i in range(4):
                a(f"v_pk_mul_f32 {G[i]}, {G[i]}, {U[i]}")
            for i in range(4):
                a(f"v_pk_add_f32 {vr(T[i],2)}, {vr(T[i],2)}, v[8:9]")
            for i in range(4):
                a(f"v_rcp_f32 v{T[i]}, v{T[i]}")
                a(f"v_rcp_f32 v{T[i]+1}, v{T[i]+1}")
            for i in range(4):
                a(f"v_pk_mul_f32 {G[i]}, {G[i]}, {vr(T[i],2)}")
            pack_store_prep(a, base)
            a("s_nop 1")
            a(f"v_permlane32_swap_b32 v{base}, v{base+2}")
            a(f"v_permlane32_swap_b32 v{base+1}, v{base+3}")
            a("s_nop 1")
            a(f"buffer_store_dwordx4 {vr(base,4)}, v{2+b}, s[20:23], s{46+m} offen sc1")
    stamp(a, opt, 1, 2, 152)

    def flag_store(a):
        a("s_waitcnt vmcnt(0)")
        a("v_mov_b32 v10, 0")
        a("v_mov_b32 v11, 1")
        a("s_mov_b64 exec, 1")
        a("buffer_store_dword v11, v10, s[52:55], 0 offen sc1")
        a("s_mov_b64 exec, -1")
    a("s_cmp_lt_u32 s72, 2")
    a("s_cbranch_scc1 .kb_c_pq")
    flag_store(a)
    a("s_cmp_eq_u32 s72, 3")
    a("s_cbranch_scc1 .kb_idle")
    core = Core(a, 2, SS1, S1, lambda s, q: 16384 + (16 * s + 4 * q) * 256, "k1")
    a("s_lshl_b32 s41, s38, 13")
    a("v_lshl_add_u32 v10, v1, 4, s41")
    for s in range(4):
        a(f"v_add_u32 v{core.baseB[s]}, {s*1024}, v10")
    a("s_mov_b32 s18, 24")
    a("s_mov_b32 s19, -1")
    a("s_branch .kb_cb_done")
    a.label(".kb_c_pq")
    kcontig_bases(a, core, "s38", "v10", "v11")
    a("s_mov_b32 s18, 32")
    a(f"s_mov_b32 s19, {30 - opt.get('flag_delay', 1)}")
    a.label(".kb_cb_done")
    a("v_lshrrev_b32 v10, 5, v1")
    a("v_lshlrev_b32 v10, 11, v10")
    a("v_bfe_u32 v11, v1, 2, 2")
    a("v_lshl_add_u32 v10, v11, 8, v10")
    a(f"v_bfe_u32 v{core.baseA[0]}, v1, 4, 1")
    a(f"v_lshl_add_u32 v10, v{core.baseA[0]}, 5, v10")
    a(f"v_and_b32 v{core.baseA[0]}, 3, v1")
    a(f"v_lshl_add_u32 v10, v{core.baseA[0]}, 3, v10")
    a("s_lshl_b32 s41, s39, 1")
    for b in range(2):
        a(f"v_xor_b32 v{core.baseA[b]}, s41, v11")
        a(f"v_lshl_add_u32 v{core.baseA[b]}, v{core.baseA[b]}, 6, v10")
        a("s_add_u32 s41, s41, 1")
    def hook(a):
        a("s_cmp_lg_u32 s18, s19")
        a("s_cbranch_scc1 .kb_nohook")
        flag_store(a)
        a.label(".kb_nohook")
    core.mainloop2("s18", "s42", "s43", "s60", 0, False, hook, st=lambda: stamp(a, opt, 3, 1, 152))
    stamp(a, opt, 3, 2, 152)
    a("s_lshl_b32 s41, s70, 3")
    a("s_lshl_b32 s44, s38, 2")
    a("s_add_u32 s41, s41, s44")
    a("s_mul_i32 s41, s41, 60")
    a("s_mul_i32 s44, s72, 20")
    a("s_add_u32 s41, s41, s44")
    a("s_lshl_b32 s44, s71, 2")
    a("s_add_u32 s41, s41, s44")
    a("s_lshl_b32 s44, s39, 1")
    a("s_add_u32 s41, s41, s44")
    a("s_lshl_b32 s41, s41, 10")
    a(f"s_add_u32 s41, s41, {PQG_OFF}")
    add64(a, "s20", "s21", "s26", "s27", "s41")
    srd(a, 20, "s20", "s21", 4 * 61440)
    a("s_mov_b32 s45, 122880")
    a("v_bfe_u32 v2, v1, 4, 1")
    a("v_mul_u32_u24 v2, 61440, v2")
    a("v_lshrrev_b32 v3, 5, v1")
    a("v_lshl_add_u32 v2, v3, 8, v2")
    a("v_and_b32 v3, 15, v1")
    a("v_lshl_add_u32 v2, v3, 4, v2")
    a("s_cmp_eq_u32 s72, 1")
    a("s_cselect_b32 s44, 0x80008000, 0")
    a("s_nop 7")
    for m in range(2):
        for b in range(2):
            for u in range(2):
                r = core.acc(m, b) + 8 * u
                pack_store_prep(a, r)
                for k in range(4):
                    a(f"v_xor_b32 v{r+k}, s44, v{r+k}")
                a("s_nop 1")
                a(f"v_permlane32_swap_b32 v{r}, v{r+2}")
                a(f"v_permlane32_swap_b32 v{r+1}, v{r+3}")
                a("s_nop 1")
                so = "s45" if b else "0"
                a(f"buffer_store_dwordx4 {vr(r,4)}, v2, s[20:23], {so} offen offset:{m*1024+u*512} {opt.get('pq_st','')}")
    stamp(a, opt, 1, 3, 152)
    a("s_endpgm")

    a.label(".kb_noncons")
    a("s_cmp_ge_u32 s72, 2")
    a("s_cbranch_scc1 .kb_set_o")
    a("s_cmp_eq_u32 s72, 0")
    a("s_cselect_b32 s80, s64, s66")
    a("s_cselect_b32 s81, s65, s67")
    a("s_lshl_b32 s37, s70, 19")
    add64(a, "s80", "s81", "s80", "s81", "s37")
    a("s_mov_b32 s82, 0x80000")
    add64(a, "s84", "s85", "s26", "s27", XN_OFF)
    a(f"s_mov_b32 s86, {2048*1280}")
    a("s_mov_b32 s74, 128")
    a("s_mov_b32 s75, 32")
    a("s_branch .kb_set_done")
    a.label(".kb_set_o")
    a(f"s_mul_i32 s37, s70, {24*16384}")
    a(f"s_add_u32 s37, s37, {H_OFF}")
    add64(a, "s80", "s81", "s26", "s27", "s37")
    a(f"s_mov_b32 s82, {24*16384}")
    a("s_mov_b32 s84, s24")
    a("s_mov_b32 s85, s25")
    a(f"s_mov_b32 s86, {1536*1280}")
    a("s_mov_b32 s74, 16384")
    a("s_mov_b32 s75, 24")
    a.label(".kb_set_done")
    a("s_and_b32 s81, s81, 0xffff")
    a("s_mov_b32 s83, 0x20000")
    a("s_and_b32 s85, s85, 0xffff")
    a("s_mov_b32 s87, 0x20000")
    a("s_cmp_ge_u32 s33, 8")
    a("s_cbranch_scc1 .kb_pf")

    a("s_sub_u32 s33, s33, 4")
    a(f"s_mul_i32 s41, s34, {128*1280}")
    a(f"s_add_u32 s41, s41, {XN_OFF}")
    add64(a, "s8", "s9", "s26", "s27", "s41")
    srd(a, 8, "s8", "s9", 128 * 1280)
    a("s_mul_i32 s41, s35, 192")
    a(f"s_mul_i32 s44, s33, {16*3072}")
    a("s_add_u32 s41, s41, s44")
    a(f"s_sub_u32 s45, {640*3072}, s41")
    add64(a, "s12", "s13", "s4", "s5", "s41")
    srd(a, 12, "s12", "s13", "s45")
    add64(a, "s16", "s17", "s6", "s7", "s41")
    srd(a, 16, "s16", "s17", "s45")
    kcontig_voffs(a, [2, 3, 4, 5], 1280, "s33", "v20", "v21")
    for j in range(3):
        a(f"v_add_u32 v20, {64*j}, v1")
        a("v_mul_u32_u24 v21, 171, v20")
        a("v_lshrrev_b32 v21, 11, v21")
        a("v_mul_u32_u24 v22, 12, v21")
        a("v_sub_u32 v22, v20, v22")
        a("v_mul_u32_u24 v21, 3072, v21")
        a(f"v_lshl_add_u32 v{6+j}, v22, 4, v21")
        a("v_xor_b32 v22, 2, v22")
        a(f"v_lshl_add_u32 v{9+j}, v22, 4, v21")
    a("s_lshl_b32 s47, s33, 12")
    a("s_mul_i32 s49, s33, 3072")

    def issue0(g):
        base = ((g + 2) % S0) * SS0
        a(f"s_mov_b32 s44, {g*128}")
        a(f"s_mov_b32 s45, {g*64*3072}")
        for j in range(4):
            a(f"s_add_u32 m0, s47, {base + j*1024}")
            a("s_nop 0")
            a.vm(f"buffer_load_dwordx4 v{2+j}, s[8:11], s44 offen lds", ("k0", g))
            if j < 3:
                a(f"s_add_u32 m0, s49, {base + GOFF + j*1024}")
                a("s_nop 0")
                a.vm(f"buffer_load_dwordx4 v{6+j}, s[12:15], s45 offen lds", ("k0", g))
                a(f"s_add_u32 m0, s49, {base + UOFF + j*1024}")
                a("s_nop 0")
                a.vm(f"buffer_load_dwordx4 v{9+j}, s[16:19], s45 offen lds", ("k0", g))
    a.vq = []
    for g in range(3):
        issue0(g)
    a("s_cmp_ge_u32 s72, 2")
    a("s_cbranch_scc1 .kb_lv_o")
    kcontig_voffs(a, [12, 13, 14, 15], 4096, "s33", "v20", "v21")
    a("s_branch .kb_lv_done")
    a.label(".kb_lv_o")
    a("v_lshl_add_u32 v12, v1, 4, s47")
    for j in range(1, 4):
        a(f"v_add_u32 v{12+j}, {1024*j}, v12")
    a.label(".kb_lv_done")
    a("v_lshrrev_b32 v20, 4, v1")
    a("v_lshlrev_b32 v21, 2, v20")
    a("v_xor_b32 v21, v21, v1")
    a("v_and_b32 v21, 15, v21")
    a("s_lshl_b32 s41, s33, 4")
    a("v_add_u32 v20, s41, v20")
    a("v_mul_u32_u24 v20, 1280, v20")
    a("v_lshl_add_u32 v16, v21, 4, v20")
    a("s_lshl_b32 s41, s71, 8")
    a("v_add_u32 v16, s41, v16")
    for j in range(1, 4):
        a(f"v_add_u32 v{16+j}, {5120*j}, v16")
    RL, ca, cb = opt.get("rot", [32, 0, 0])
    a(f"s_mul_i32 s88, s71, {ca}")
    a(f"s_mul_i32 s89, s70, {cb}")
    a("s_add_u32 s88, s88, s89")
    a(f"s_and_b32 s88, s88, {RL-1}")
    a("s_cmp_ge_u32 s72, 2")
    a("s_cselect_b32 s88, 0, s88")
    a("s_mov_b32 s78, 0")
    a("s_mov_b32 s79, 0")
    a("s_mul_i32 s76, s88, s74")
    a(f"s_mul_i32 s77, s88, {64*1280}")

    def adv(which):
        c, d, m = ("s78", "s76", "s74") if which == "B" else ("s79", "s77", str(64*1280))
        a(f"s_add_u32 {c}, {c}, 1")
        a(f"s_add_u32 s89, {c}, s88")
        a(f"s_and_b32 s89, s89, {RL-1}")
        a(f"s_andn2_b32 {d}, {c}, {RL-1}")
        a(f"s_or_b32 {d}, {d}, s89")
        a(f"s_mul_i32 {d}, {d}, {m}")
    for g in range(7):
        a.vwait(("k0", g))
        a("s_barrier")
        issue0(g + 3)

    def issue1(j, half, bflags=""):
        for jj in range(4):
            if "B" in half:
                a(f"s_add_u32 m0, s47, {j*SS1 + jj*1024}")
                a("s_nop 0")
                a.vm(f"buffer_load_dwordx4 v{12+jj}, s[80:83], s76 offen {bflags} lds", ("k1", j))
            if "A" in half:
                a(f"s_add_u32 m0, s47, {j*SS1 + 16384 + jj*1024}")
                a("s_nop 0")
                a.vm(f"buffer_load_dwordx4 v{16+jj}, s[84:87], s77 offen lds", ("k1", j))
        if "B" in half:
            adv("B")
        if "A" in half:
            adv("A")

    def steady(pfx, bflags):
        a("s_mov_b32 s46, s47")

        def issue_dyn(tag):
            for jj in range(4):
                a(f"s_add_u32 m0, s46, {jj*1024}")
                a("s_nop 0")
                a.vm(f"buffer_load_dwordx4 v{12+jj}, s[80:83], s76 offen {bflags} lds", tag)
                a(f"s_add_u32 m0, s46, {16384 + jj*1024}")
                a("s_nop 0")
                a.vm(f"buffer_load_dwordx4 v{16+jj}, s[84:87], s77 offen lds", tag)
            adv("B")
            adv("A")
            a(f"s_add_u32 s46, s46, {SS1}")
            a(f"s_cmp_ge_u32 s46, {S1*SS1}")
            a(f"s_cselect_b32 s40, {S1*SS1}, 0")
            a("s_sub_u32 s46, s46, s40")
        for j in range(1, 4):
            a.vwait(("k1", j))
            a("s_barrier")
            issue_dyn(("k1", j + 4))
        a("s_sub_u32 s75, s75, 8")
        a.label(f".{pfx}_lloop")
        a("s_waitcnt vmcnt(24)")
        a("s_barrier")
        issue_dyn("x")
        a("s_sub_u32 s75, s75, 1")
        a("s_cmp_lg_u32 s75, 0")
        a(f"s_cbranch_scc1 .{pfx}_lloop")
        for k in range(3, -1, -1):
            a(f"s_waitcnt vmcnt({8*k})")
            a("s_barrier")
        a("s_endpgm")

    a("s_cmp_ge_u32 s72, 2")
    a("s_cbranch_scc1 .kb_l_o")
    vq_save = list(a.vq)
    for g in range(7, 10):
        a.vwait(("k0", g))
        a("s_barrier")
        issue1(g - 7, "AB", cnt)
    a("s_barrier")
    issue1(3, "AB", cnt)
    issue1(4, "AB", cnt)
    a.vwait(("k1", 0))
    a("s_barrier")
    steady("kbp", cnt)
    a.label(".kb_l_o")
    a.vq = vq_save
    a("s_cmp_eq_u32 s72, 3")
    a("s_cselect_b32 s86, 0, s86")
    for g in range(7, 10):
        a.vwait(("k0", g))
        a("s_barrier")
        issue1(g - 7, "A")
    a("s_barrier")
    a("s_cmp_eq_u32 s72, 3")
    a("s_cbranch_scc1 .kb_done")
    issue1(3, "A")
    issue1(4, "A")
    a("s_lshl_b32 s41, s70, 8")
    a(f"s_add_u32 s41, s41, {FLAG_OFF}")
    add64(a, "s52", "s53", "s26", "s27", "s41")
    srd(a, 52, "s52", "s53", 256)
    a("v_lshlrev_b32 v20, 2, v1")
    a("s_mov_b32 s56, 200000")
    a.label(".kb_poll")
    a("buffer_load_dword v21, v20, s[52:55], 0 offen sc1")
    a("s_waitcnt vmcnt(0)")
    a("v_cmp_ne_u32 vcc, 0, v21")
    a("s_sub_u32 s56, s56, 1")
    a("s_cmp_eq_u32 s56, 0")
    a("s_cbranch_scc1 .kb_polled")
    a("s_cmp_eq_u64 vcc, -1")
    a("s_cbranch_scc1 .kb_polled")
    a("s_sleep 2")
    a("s_branch .kb_poll")
    a.label(".kb_polled")
    a.vq = []
    for j in range(5):
        issue1(j, "B", "sc1")
    a.vwait(("k1", 0))
    a("s_barrier")
    steady("kbo", "sc1")

    a.label(".kb_pf")
    a("s_load_dwordx2 s[8:9], s[0:1], 0")
    a("s_load_dwordx4 s[12:15], s[0:1], 24")
    a("v_and_b32 v2, 31, v1")
    a("s_mul_i32 s41, s71, 26")
    a("v_add_u32 v2, s41, v2")
    a("v_lshlrev_b32 v2, 12, v2")
    a("v_lshrrev_b32 v3, 5, v1")
    a("v_lshl_add_u32 v2, v3, 7, v2")
    a("v_min_u32 v3, 39, v1")
    a("s_mul_i32 s41, s31, 5120")
    a("v_lshl_add_u32 v3, v3, 7, s41")
    a("s_mul_i32 s41, s31, 25600")
    a("v_lshl_add_u32 v40, v1, 7, s41")
    for j in range(1, 4):
        a(f"v_add_u32 v{40+j}, {8192*j}, v40")
    a(f"v_min_u32 v43, {640*1280-128}, v43")
    a("s_mul_i32 s41, s31, 10240")
    a("v_lshl_add_u32 v44, v1, 7, s41")
    a("v_add_u32 v45, 8192, v44")
    a(f"v_min_u32 v45, {256*1280-128}, v45")
    a("s_waitcnt lgkmcnt(0)")
    a(f"s_mul_i32 s41, s30, {256*1280}")
    add64(a, "s8", "s9", "s8", "s9", "s41")
    srd(a, 8, "s8", "s9", 256 * 1280)
    srd(a, 16, "s14", "s15", 640 * 1280)
    srd(a, 12, "s12", "s13", 640 * 1280)
    pfn = opt.get("pf_nt", "nt")
    xfn = opt.get("pf_xn", "nt")
    k2ops = []
    for j in range(4):
        k2ops.append((f"v{40+j}", 12, 0, "nt"))
        k2ops.append((f"v{40+j}", 16, 0, "nt"))
    for j in range(2):
        k2ops.append((f"v{44+j}", 8, 0, "nt"))
    if not opt.get("pf_k2", 1):
        k2ops = []
    cops = [("v2", 80, p * 256, pfn) for p in range(16)]
    xops = [("v3", 84, p * 2 * 81920, xfn) for p in range(16)]
    B0 = opt.get("pf_b0", 1)

    def run(ops, nticks, burst):
        ops = list(ops)
        n = [0]

        def one():
            if ops:
                v, sd, so, fl = ops.pop(0)
                a(f"s_mov_b32 s44, {so}")
                a(f"buffer_load_dword v{8 + (n[0] % 32)}, {v}, {sr(sd,4)}, s44 offen {fl}")
                n[0] += 1
        for _ in range(burst):
            one()
        for t in range(nticks):
            if not ops:
                break
            a("s_barrier")
            one()
        while ops:
            one()
        a("s_endpgm")
    if not opt.get("pf", 1):
        a("s_endpgm")
    a("s_cmp_ge_u32 s72, 2")
    a("s_cbranch_scc1 .kb_pf_o")
    inter = []
    for p in range(16):
        inter += [cops[p], xops[p]]
    run(inter + k2ops, 42, 2 * B0)
    a.label(".kb_pf_o")
    inter = []
    k2o = list(k2ops)
    for p in range(12):
        inter.append((xops[p][0], xops[p][1], xops[p][2], "nt"))
        if p >= 2 and k2o:
            inter.append(k2o.pop(0))
    run(inter + k2o, 34, B0)
    a.label(".kb_idle")
    stamp(a, opt, 1, 3, 152)
    a.label(".kb_done")
    a("s_endpgm")
    nv = 160 if opt.get('stamps') else 152
    return name, a.text(), kernel_desc(name, nv, nv), f"; @launch kernel={name} grid=(256,1,1) block=(576,1,1) lds={S1*SS1}"


def gen_k2(opt):
    a = Asm()
    name = "k2_kernel"
    S = 16
    SS = 10240
    NST = 20
    NL = 4
    a.raw(kernel_header(name))
    a("s_cmp_ge_u32 s2, 256")
    a("s_cbranch_scc1 .k2_done")
    a("s_load_dwordx2 s[24:25], s[0:1], 0")
    a("s_load_dwordx4 s[4:7], s[0:1], 24")
    a("s_load_dwordx2 s[28:29], s[0:1], 72")
    a("s_load_dwordx2 s[26:27], s[0:1], 88")
    a("v_and_b32 v1, 63, v0")
    a("v_lshrrev_b32 v2, 6, v0")
    a("s_and_b32 s30, s2, 7")
    a("s_lshr_b32 s31, s2, 3")
    a("s_lshl_b32 s34, s30, 2")
    a("s_and_b32 s35, s31, 3")
    a("s_add_u32 s34, s34, s35")
    a("s_lshr_b32 s35, s31, 2")
    a("v_readfirstlane_b32 s33, v2")
    a("s_cmp_ge_u32 s33, 4")
    a("s_cbranch_scc1 .k2_loader")

    bA = [[2 + g * 2 + kb for kb in range(2)] for g in range(3)]
    xo = 8
    fB = [12 + 4 * i for i in range(40)]
    fA = [[172 + st * 20 + e * 4 for e in range(5)] for st in range(2)]
    acc = [212 + e * 4 for e in range(5)]
    xr = [232 + 2 * e for e in range(5)]
    gr = [242 + 2 * e for e in range(5)]
    NV = 256
    a("s_lshl_b32 s41, s34, 2")
    a("s_add_u32 s41, s41, s33")
    a("s_mul_i32 s44, s41, 61440")
    a(f"s_add_u32 s44, s44, {PQG_OFF}")
    a("v_lshlrev_b32 v9, 4, v1")
    a("s_waitcnt lgkmcnt(0)")
    add64(a, "s16", "s17", "s26", "s27", "s44")
    srd(a, 16, "s16", "s17", 61440)
    stamp(a, opt, 2, 0, 172)
    pqn = opt.get("k2_pq", "")
    for i in range(40):
        so = "0" if i < 4 else f"s{50 + i // 4}"
        if i % 4 == 0 and i:
            a(f"s_mov_b32 s{50 + i // 4}, {i*1024}")
        a.vm(f"buffer_load_dwordx4 {vr(fB[i],4)}, v9, s[16:19], {so} offen offset:{(i % 4)*1024} {pqn}", ("B", i))
        if i == 3:
            a("v_and_b32 v11, 15, v1")
            a("v_lshrrev_b32 v10, 4, v1")
            a("s_mul_i32 s44, s35, 80")
            a(f"s_mov_b32 s45, {40*1024}")
            a("v_lshl_add_u32 v2, v10, 2, s44")
            for e in range(5):
                g = 3 + (e & 1)
                a(f"v_lshrrev_b32 v{g}, 3, v2")
                a(f"v_lshlrev_b32 v{g}, 8, v{g}")
                a(f"v_lshl_add_u32 v{g}, v11, 4, v{g}")
                a("v_and_b32 v5, 4, v2")
                a(f"v_lshl_add_u32 v{g}, v5, 1, v{g}")
                a.vm(f"buffer_load_dwordx2 {vr(gr[e],2)}, v{g}, s[16:19], s45 offen {pqn}", "g")
                a("v_add_u32 v2, 16, v2")
    a(f"s_mul_i32 s41, s41, {16*1280}")
    a("s_mul_i32 s44, s35, 160")
    a("s_add_u32 s41, s41, s44")
    add64(a, "s8", "s9", "s24", "s25", "s41")
    srd(a, 8, "s8", "s9", 15 * 1280 + 160)
    add64(a, "s12", "s13", "s28", "s29", "s41")
    srd(a, 12, "s12", "s13", 15 * 1280 + 160)
    a(f"v_mul_u32_u24 v{xo}, 1280, v11")
    a(f"v_lshl_add_u32 v{xo}, v10, 3, v{xo}")
    for e in range(5):
        a.vm(f"buffer_load_dwordx2 {vr(xr[e],2)}, v{xo}, s[8:11], 0 offen offset:{32*e}", "x")
    a("v_lshrrev_b32 v9, 1, v11")
    a("v_xor_b32 v9, v9, v10")
    a("v_lshlrev_b32 v11, 7, v11")
    for g in range(3):
        for kb in range(2):
            a(f"v_xor_b32 v{bA[g][kb]}, {4*kb}, v9")
            a(f"v_lshl_add_u32 v{bA[g][kb]}, v{bA[g][kb]}, 4, v11")
            if g:
                a(f"v_add_u32 v{bA[g][kb]}, {g*6*SS}, v{bA[g][kb]}")
    for e in range(5):
        for r in range(4):
            a(f"v_mov_b32 v{acc[e]+r}, 0")
    a.vwait("g")
    for e in range(5):
        for p in range(2):
            r = gr[e] + p
            a(f"v_lshlrev_b32 v9, 16, v{r}")
            a(f"v_and_b32 v10, 0xffff0000, v{r}")
            a(f"v_mul_f32 v11, {f32(-LOG2E)}, v9")
            a(f"v_mul_f32 v252, {f32(-LOG2E)}, v10")
            a("v_exp_f32 v11, v11")
            a("v_exp_f32 v252, v252")
            a("s_nop 0")
            a("v_add_f32 v11, 1.0, v11")
            a("v_add_f32 v252, 1.0, v252")
            a("v_rcp_f32 v11, v11")
            a("v_rcp_f32 v252, v252")
            a("s_nop 0")
            a("v_mul_f32 v9, v9, v11")
            a("v_mul_f32 v10, v10, v252")
            a(f"v_cvt_pk_bf16_f32 v{r}, v9, v10")

    def reads(st, stage, kb):
        slot = stage % S
        g, so = slot // 6, (slot % 6) * SS
        return [(f"ds_read_b128 {vr(fA[st][e],4)}, v{bA[g][kb]} offset:{so+e*2048}", ("A", st, e)) for e in range(5)]

    def step(st, i, nxt, barrier=False):
        rd = list(nxt)
        a.vwait(("B", i))
        for e in range(5):
            a.lwait(("A", st, e))
            c = vr(acc[e], 4)
            a(f"v_mfma_f32_16x16x32_bf16 {c}, {vr(fA[st][e],4)}, {vr(fB[i],4)}, {c}")
            if e == 0 and barrier:
                a.lwait_all()
                a("s_barrier")
            for _ in range(2):
                if rd:
                    t, tag = rd.pop(0)
                    a.lds(t, tag)
        assert not rd
    BP = opt.get("k2_bp", 2)
    a("s_barrier")
    for t, tag in reads(0, 0, 0):
        a.lds(t, tag)
    for stg in range(NST):
        step(0, 2 * stg, reads(1, stg, 1))
        if stg < NST - 1:
            step(1, 2 * stg + 1, reads(0, stg + 1, 0), barrier=((stg + 1) % BP == 0))
        else:
            step(1, 2 * stg + 1, [])
    stamp(a, opt, 2, 1, 12)
    a("s_nop 7")
    a.vwait_all()
    for e in range(5):
        for p in range(2):
            y0, y1 = acc[e] + 2 * p, acc[e] + 2 * p + 1
            a(f"v_cvt_pk_bf16_f32 v2, v{y0}, v{y1}")
            a(f"v_lshlrev_b32 v{y0}, 16, v2")
            a(f"v_and_b32 v{y1}, 0xffff0000, v2")
            a(f"v_lshlrev_b32 v3, 16, v{gr[e]+p}")
            a(f"v_and_b32 v4, 0xffff0000, v{gr[e]+p}")
            a(f"v_mul_f32 v{y0}, v{y0}, v3")
            a(f"v_mul_f32 v{y1}, v{y1}, v4")
            a(f"v_cvt_pk_bf16_f32 v2, v{y0}, v{y1}")
            a(f"v_lshlrev_b32 v{y0}, 16, v2")
            a(f"v_and_b32 v{y1}, 0xffff0000, v2")
            a(f"v_lshlrev_b32 v3, 16, v{xr[e]+p}")
            a(f"v_and_b32 v4, 0xffff0000, v{xr[e]+p}")
            a(f"v_add_f32 v{y0}, v{y0}, v3")
            a(f"v_add_f32 v{y1}, v{y1}, v4")
            a(f"v_cvt_pk_bf16_f32 v{xr[e]+p}, v{y0}, v{y1}")
        a(f"buffer_store_dwordx2 {vr(xr[e],2)}, v{xo}, s[12:15], 0 offen offset:{32*e}")
    stamp(a, opt, 2, 2, 12)
    a("s_endpgm")

    a.label(".k2_loader")
    a("s_sub_u32 s33, s33, 4")
    a(f"s_mul_i32 s41, s35, {80*1280}")
    a("v_lshrrev_b32 v10, 3, v1")
    a("v_mul_u32_u24 v10, 1280, v10")
    a("v_lshrrev_b32 v11, 4, v1")
    a("v_xor_b32 v11, v11, v1")
    a("v_and_b32 v11, 7, v11")
    a("v_lshl_add_u32 v2, v11, 4, v10")
    a("v_xor_b32 v11, 4, v11")
    a("v_lshl_add_u32 v3, v11, 4, v10")
    a("s_waitcnt lgkmcnt(0)")
    add64(a, "s8", "s9", "s4", "s5", "s41")
    srd(a, 8, "s8", "s9", 80 * 1280)
    add64(a, "s12", "s13", "s6", "s7", "s41")
    srd(a, 12, "s12", "s13", 80 * 1280)
    for w in range(NL):
        if w < NL - 1:
            a(f"s_cmp_lg_u32 s33, {w}")
            a(f"s_cbranch_scc1 .k2_ld{w+1}")
        a.vq = []

        def issue(stg):
            slot = stg % S
            for j in range(10):
                if (stg * 10 + j) % NL != w:
                    continue
                a(f"s_mov_b32 m0, {slot*SS + j*1024}")
                a(f"s_mov_b32 s44, {j*8*1280 + (stg % 10)*128}")
                sd = 8 if stg < 10 else 12
                a.vm(f"buffer_load_dwordx4 v{2+(j&1)}, {sr(sd,4)}, s44 offen lds", stg)
        for stg in range(S):
            issue(stg)
        nxt = S
        for stg in range(0, NST, BP):
            a.vwait(*range(stg, stg + BP))
            a("s_barrier")
            while nxt < NST and nxt - S < stg:
                issue(nxt)
                nxt += 1
        a("s_endpgm")
        if w < NL - 1:
            a.label(f".k2_ld{w+1}")
    a.label(".k2_done")
    a("s_endpgm")
    return name, a.text(), kernel_desc(name, NV, NV), f"; @launch kernel={name} grid=(256,1,1) block=({256+64*NL},1,1) lds={S*SS}"


def gen_probe(opt):
    a = Asm()
    name = "probe_kernel"
    (ka, sa, opa), (kb_, sb, opb), mul = opt["probe"]
    a.raw(kernel_header(name))
    a("s_cmp_ge_u32 s2, 1")
    a("s_cbranch_scc1 .pr_done")
    a("s_load_dwordx2 s[4:5], s[0:1], 88")
    a("v_lshlrev_b32 v1, 10, v0")
    a("s_waitcnt lgkmcnt(0)")
    add64(a, "s4", "s5", "s4", "s5", STAMP_OFF)
    srd(a, 4, "s4", "s5", 0x2000000)
    for i in range(4):
        a(f"s_mov_b32 s10, {ka*512*1024 + sa*16 + i*65536}")
        a(f"buffer_load_dwordx4 v[{4+4*i}:{7+4*i}], v1, s[4:7], s10 offen sc1")
        a(f"s_mov_b32 s10, {kb_*512*1024 + sb*16 + i*65536}")
        a(f"buffer_load_dwordx4 v[{20+4*i}:{23+4*i}], v1, s[4:7], s10 offen sc1")
    a("s_waitcnt vmcnt(0)")
    if opa == "xcc":
        a("v_and_b32 v2, 7, v0")
        a("s_mov_b32 s20, 0")
        for i in range(4):
            a(f"v_and_b32 v3, 15, v{7+4*i}")
            a("v_cmp_ne_u32 vcc, v2, v3")
            a("s_bcnt1_i32_b64 s21, vcc")
            a("s_add_u32 s20, s20, s21")
    elif opa == "clk":
        a("v_sub_u32 v2, v22, v6")
        a("v_sub_u32 v3, v20, v4")
        a("v_cvt_f32_u32 v2, v2")
        a("v_cvt_f32_u32 v3, v3")
        a("v_rcp_f32 v3, v3")
        a("s_nop 1")
        a("v_mul_f32 v2, v2, v3")
        a(f"v_mul_f32 v2, {f32(100.0)}, v2")
        a("v_cvt_u32_f32 v2, v2")
        a("s_nop 1")
        a("v_readfirstlane_b32 s20, v2")
    else:
        a("v_readfirstlane_b32 s12, v4")
        a("s_sub_u32 s12, s12, 0x100000")
        for base, op, dst in ((4, opa, "s21"), (20, opb, "s22")):
            for i in range(4):
                a(f"v_subrev_u32 v{base+4*i}, s12, v{base+4*i}")
            for i in range(1, 4):
                a(f"v_{op}_u32 v{base}, v{base}, v{base+4*i}")
            a("s_nop 1")
            a(f"v_readfirstlane_b32 {dst}, v{base}")
            for l in range(1, 64):
                a(f"v_readlane_b32 s13, v{base}, {l}")
                a(f"s_{op}_u32 {dst}, {dst}, s13")
        a("s_sub_u32 s20, s22, s21")
    a("s_min_u32 s20, s20, 10000")
    a(f"s_mul_i32 s20, s20, {mul}")
    a("s_memrealtime s[14:15]")
    a("s_waitcnt lgkmcnt(0)")
    a.label(".pr_loop")
    a("s_memrealtime s[16:17]")
    a("s_waitcnt lgkmcnt(0)")
    a("s_sub_u32 s16, s16, s14")
    a("s_cmp_lt_u32 s16, s20")
    a("s_cbranch_scc1 .pr_loop")
    a.label(".pr_done")
    a("s_endpgm")
    return name, a.text(), kernel_desc(name, 48, 48), f"; @launch kernel={name} grid=(1,1,1) block=(64,1,1) lds=0"


def build(opt, gens=None):
    K1.OPT.clear(); K1.OPT.update(opt)
    gens = gens or [gen_ln, gen_kb, gen_k2]
    if opt.get("probe"):
        gens = gens + [gen_probe]
    ks = [g(opt) for g in gens]
    out = HEADER
    for k in ks:
        out += k[3] + "\n"
    out += '.amdgcn_target "amdgcn-amd-amdhsa--gfx950"\n'
    for k in ks:
        out += k[1]
    out += '.section .rodata,"a"\n'
    for k in ks:
        out += k[2]
    return out


if __name__ == "__main__":
    import sys, json
    opt = json.loads(sys.argv[2]) if len(sys.argv) > 2 else {}
    open(sys.argv[1], "w").write(build(opt))
```

```python
from asmlib import *
from kernels import f32, LOG2E, srd, add64, rn_bf16, HEADER

AIMG_OFF = 0
FLAG_OFF = 5 << 20
STAT_OFF = (5 << 20) + 65536
HIMG_OFF = 6 << 20
XCH_OFF = 12 << 20
STAMP_OFF = 32 << 20

SSA = 51200
GOFF, UOFF, HOFF = 16384, 28672, 40960
RA0, SA, NSA = 81920, 20480, 4
SB, NSB = 16384, 5
SCR = 153600
T4_O, M_O, R_O, CS_O, NON_O, WT_O = SCR, SCR + 2048, SCR + 2560, SCR + 3072, SCR + 4224, SCR + 4352
C1 = -2.0 * 0.7978845608028654 * LOG2E
C2 = C1 * 0.044715
POLL_MAX = 20000


def stamp(a, opt, kidx, slot, vb=252):
    if not opt.get("stamps"):
        return
    a("s_memrealtime s[90:91]")
    a("s_memtime s[98:99]")
    a("s_waitcnt lgkmcnt(0)")
    a.lq = []
    a("s_getreg_b32 s99, hwreg(HW_REG_XCC_ID)")
    a(f"s_add_u32 s92, s26, {STAMP_OFF}")
    a("s_addc_u32 s93, s27, 0")
    a("s_and_b32 s93, s93, 0xffff")
    a("s_mov_b32 s94, 0x2000000")
    a("s_mov_b32 s95, 0x20000")
    a(f"s_add_u32 s96, s2, {kidx*512}")
    a("s_lshl_b32 s96, s96, 10")
    a(f"s_add_u32 s96, s96, {slot*16}")
    a("s_lshl_b32 s97, s28, 6")
    a("s_add_u32 s96, s96, s97")
    a(f"v_mov_b32 v{vb}, s90")
    a(f"v_mov_b32 v{vb+1}, s91")
    a(f"v_mov_b32 v{vb+2}, s98")
    a(f"v_mov_b32 v{vb+3}, s99")
    a("s_nop 4")
    a.vm(f"buffer_store_dwordx4 v[{vb}:{vb+3}], off, s[92:95], s96", "stamp")
    a("s_nop 1")


def step(a, opt, mf, rd, fillers=(), barrier=False, per=1):
    rd = list(rd)
    fl = list(fillers)
    if opt.get("no_rd"):
        rd = []
    for i, (txt, tags) in enumerate(mf):
        a.lwait(*tags)
        if not opt.get("no_mma"):
            a(txt)
        if i == 0 and barrier:
            a.lwait_all()
            a("s_barrier")
        if rd:
            for _ in range(per):
                if rd:
                    t, tag = rd.pop(0)
                    a.lds(t, tag)
        else:
            for _ in range(2):
                if fl:
                    a(fl.pop(0))
    assert not rd
    for f in fl:
        a(f)


def sel4(a, dst, part, vals):
    a(f"s_mov_b32 {dst}, {vals[0]}")
    for p in range(1, 4):
        if vals[p] != vals[0]:
            a(f"s_cmp_eq_u32 {part}, {p}")
            a(f"s_cselect_b32 {dst}, {vals[p]}, {dst}")


def sum8(a, v):
    for m in ("quad_perm:[1,0,3,2]", "quad_perm:[2,3,0,1]", "row_half_mirror"):
        a("s_nop 1")
        a(f"v_add_f32_dpp {v}, {v}, {v} {m} row_mask:0xf bank_mask:0xf")


class AsmND(Asm):
    skip = ()

    def dma(self, s, tag=None):
        if any(k in s for k in self.skip):
            return
        self.vm(s, tag)


def gen(opt):
    a = AsmND()
    a.skip = opt.get("skip", [])
    name = "fused_kernel"
    segs = opt.get("segs", [[(0, 12), (12, 11), (0, 0)],
                            [(23, 9), (32, 14), (0, 0)],
                            [(46, 9), (84, 4), (55, 9)],
                            [(64, 10), (74, 10), (0, 0)]])
    cover = sorted(s for p in segs for (b, L) in p for s in range(b, b + L))
    assert cover == list(range(88)), cover
    NST = [sum(L for _, L in p) for p in segs]
    a.raw(kernel_header(name))
    a("s_cmp_ge_u32 s2, 256")
    a("s_cbranch_scc1 .f_done")
    a("s_load_dwordx8 s[4:11], s[0:1], 0")
    a("s_load_dwordx2 s[12:13], s[0:1], 32")
    a("s_load_dwordx4 s[16:19], s[0:1], 48")
    a("s_load_dwordx8 s[20:27], s[0:1], 64")
    a("v_lshrrev_b32 v2, 6, v0")
    a("v_and_b32 v1, 63, v0")
    a("s_bfe_u32 s33, s2, 0x30003")
    a("v_readfirstlane_b32 s28, v2")
    a("s_lshr_b32 s32, s2, 6")
    a("s_bfe_u32 s31, s2, 0x20001")
    a("s_and_b32 s29, s2, 1")
    a("s_lshl_b32 s29, s29, 3")
    a("s_add_u32 s29, s29, s33")
    a("s_lshl_b32 s30, s31, 2")
    a("s_add_u32 s30, s30, s32")
    a("s_cmp_lt_u32 s28, 4")
    a("s_cbranch_scc1 .f_cons")
    a("s_cmp_eq_u32 s28, 7")
    a("s_cbranch_scc1 .f_aux")

    ra, rc, rp, rx = opt.get("rotA", [5, 10, 0, 0])
    a(f"s_mul_i32 s40, s33, {ra}")
    a(f"s_mul_i32 s41, s32, {rc}")
    a("s_lshr_b32 s40, s40, 2")
    a("s_lshr_b32 s41, s41, 2")
    a("s_add_u32 s40, s40, s41")
    if rp:
        a(f"s_mul_i32 s41, s31, {rp}")
        a("s_lshr_b32 s41, s41, 2")
        a("s_add_u32 s40, s40, s41")
    for _ in range(3 if rp else 2):
        a("s_cmp_ge_u32 s40, 10")
        a("s_cselect_b32 s41, 10, 0")
        a("s_sub_u32 s40, s40, s41")
    a("v_lshrrev_b32 v3, 3, v1")
    a("v_and_b32 v4, 7, v1")
    a("v_xor_b32 v4, v4, v3")
    a("v_lshlrev_b32 v4, 4, v4")
    a("v_mul_u32_u24 v5, 1280, v3")
    a("v_add_u32 v5, v5, v4")
    a(f"s_mov_b32 s41, {2*SSA}")
    a("s_mov_b32 s42, 0")
    a("s_cmp_eq_u32 s28, 4")
    a("s_cbranch_scc0 .f_l12")

    def setupB(nB, nA):
        a("s_lshl_b32 s70, s34, 15")
        a("v_lshlrev_b32 v20, 12, v3")
        a("v_add3_u32 v20, v20, v4, s70")
        for j in range(1, nB):
            a(f"v_add_u32 v{20+j}, {j*32768}, v20")
        a("s_lshl_b32 s70, s34, 10")
        a("v_lshl_add_u32 v36, v1, 4, s70")
        for j in range(1, nB):
            a(f"v_add_u32 v{36+j}, {j*1024}, v36")
        a("s_mov_b32 s36, s70")
        a(f"s_add_u32 s38, s70, {NSB*SB}")
        a("s_lshl_b32 s70, s35, 10")
        a("v_lshl_add_u32 v28, v1, 4, s70")
        for j in range(1, nA):
            a(f"v_add_u32 v{28+j}, {j*1024}, v28")
        a(f"s_add_u32 s37, s70, {RA0}")
        a(f"s_add_u32 s39, s70, {RA0+NSA*SA}")
        a("s_lshl_b32 s70, s35, 6")
        for j in range(nA):
            a(f"v_add_u32 v54, s70, v1")
            if j:
                a(f"v_add_u32 v54, {64*j}, v54")
            a("v_mul_u32_u24 v55, 52429, v54")
            a("v_lshrrev_b32 v55, 20, v55")
            a("v_mul_u32_u24 v56, 20, v55")
            a("v_sub_u32 v56, v54, v56")
            a("v_bfe_u32 v54, v55, 3, 1")
            a("v_lshlrev_b32 v54, 1, v54")
            a("v_xor_b32 v56, v56, v54")
            a("v_mul_u32_u24 v55, 1280, v55")
            a(f"v_lshl_add_u32 v{44+j}, v56, 4, v55")
        a("s_lshl_b32 s70, s29, 19")
        add64(a, "s44", "s45", "s6", "s7", "s70")
        a("s_and_b32 s45, s45, 0xffff")
        add64(a, "s46", "s47", "s8", "s9", "s70")
        a("s_and_b32 s47, s47, 0xffff")
        a("s_mov_b32 s64, s44")
        a("s_mov_b32 s65, s45")
        a("s_mov_b32 s66, 0x80000")
        a("s_mov_b32 s67, 0x20000")
        a(f"s_mul_i32 s70, s29, {24*16384}")
        a(f"s_add_u32 s70, s70, {HIMG_OFF}")
        add64(a, "s52", "s53", "s26", "s27", "s70")
        srd(a, 52, "s52", "s53", 24 * 16384)
        a(f"s_mul_i32 s70, s32, 655360")
        a(f"s_add_u32 s70, s70, {AIMG_OFF}")
        add64(a, "s56", "s57", "s26", "s27", "s70")
        srd(a, 56, "s56", "s57", 5 * 655360)
        a("s_mul_i32 s70, s32, 320")
        add64(a, "s60", "s61", "s20", "s21", "s70")
        a(f"s_sub_u32 s48, {1536*1280}, s70")
        srd(a, 60, "s60", "s61", "s48")
        sel4(a, "s70", "s31", [p[0][0] | p[1][0] << 8 | p[2][0] << 16 for p in segs])
        sel4(a, "s71", "s31", [p[0][1] | p[1][1] << 8 | p[2][1] << 16 for p in segs])
        rbn, rdn = opt.get("rotB", [1, 2])
        a(f"s_mul_i32 s72, s33, {rbn}")
        a(f"s_mul_i32 s73, s32, {rdn}")
        a("s_add_u32 s72, s72, s73")
        a("s_and_b32 s72, s72, 7")
        a("v_mov_b32 v52, 127")
        a("v_mov_b32 v53, v1")
        for k in range(3):
            a(f"s_bfe_u32 s73, s70, {(8 << 16) | (8*k)}")
            a(f"s_bfe_u32 s74, s71, {(8 << 16) | (8*k)}")
            a("s_mul_i32 s75, s74, s72")
            a("s_lshr_b32 s75, s75, 3")
            a("v_add_u32 v54, s75, v53")
            a("v_subrev_u32 v55, s74, v54")
            a("v_min_u32 v54, v54, v55")
            a("v_add_u32 v54, s73, v54")
            a("v_cmp_gt_u32 vcc, s74, v53")
            a("v_cndmask_b32 v52, v52, v54, vcc")
            a("v_subrev_u32 v53, s74, v53")
        a("s_mov_b32 s76, 0")
        a("s_mov_b32 s77, 0")

    def loaderA(pfx, instrs, nB, nA):
        n = len(instrs)
        h = opt.get("b0_at", n // 2)
        a.label(f".{pfx}_a")
        a("s_cmp_lt_u32 s42, 3")
        a(f"s_cbranch_scc1 .{pfx}_a1")
        a(f"s_waitcnt vmcnt({n})")
        a("s_barrier")
        a.label(f".{pfx}_a1")
        a("s_lshl_b32 s43, s40, 7")
        a(f"s_mul_i32 s49, s40, {64*3072}")
        a("s_add_u32 s50, s41, s68")
        a("s_add_u32 s51, s41, s69")
        for i, (sd, v, lb, lo, so) in enumerate(instrs):
            if i == h:
                a("s_cmp_lg_u32 s42, 1")
                a(f"s_cbranch_scc1 .{pfx}_a3")
                setupB(nB, nA)
                a(f"s_waitcnt vmcnt({h})")
                a("s_barrier")
                a.label(f".{pfx}_a3")
            a(f"s_add_u32 m0, {lb}, {lo}")
            a("s_nop 0")
            a.dma(f"buffer_load_dwordx4 v{v}, {sr(sd,4)}, {so} offen lds")
        a("s_add_u32 s40, s40, 1")
        a("s_cmp_eq_u32 s40, 10")
        a("s_cselect_b32 s40, 0, s40")
        a(f"s_add_u32 s41, s41, {SSA}")
        a(f"s_cmp_eq_u32 s41, {3*SSA}")
        a("s_cselect_b32 s41, 0, s41")
        a("s_add_u32 s42, s42, 1")
        a("s_cmp_lt_u32 s42, 10")
        a(f"s_cbranch_scc1 .{pfx}_a")
        a(f"s_waitcnt vmcnt({n})")
        a("s_barrier")

    def advB():
        a("s_add_u32 s76, s76, 1")
        a(f"s_add_u32 s36, s36, {SB}")
        a("s_cmp_ge_u32 s36, s38")
        a(f"s_cselect_b32 s70, {NSB*SB}, 0")
        a("s_sub_u32 s36, s36, s70")

    def advA():
        a("s_add_u32 s77, s77, 1")
        a(f"s_add_u32 s37, s37, {SA}")
        a("s_cmp_ge_u32 s37, s39")
        a(f"s_cselect_b32 s70, {NSA*SA}, 0")
        a("s_sub_u32 s37, s37, s70")

    def BY(nB):
        a("s_cmp_lt_u32 s70, 32")
        a("s_cselect_b32 s64, s44, s46")
        a("s_cselect_b32 s65, s45, s47")
        a("s_and_b32 s71, s70, 31")
        a("s_lshl_b32 s71, s71, 7")
        for j in range(nB):
            a(f"s_add_u32 m0, s36, {j*1024}")
            a("s_nop 0")
            a.dma(f"buffer_load_dwordx4 v{20+j}, s[64:67], s71 offen {opt.get('c_nt','')} lds")

    def BO(nB):
        a("s_cmp_lt_u32 s70, 88")
        a(f"s_cselect_b32 s54, {24*16384}, 0")
        a("s_sub_u32 s71, s70, 64")
        a("s_lshl_b32 s71, s71, 14")
        for j in range(nB):
            a(f"s_add_u32 m0, s36, {j*1024}")
            a("s_nop 0")
            a.dma(f"buffer_load_dwordx4 v{36+j}, s[52:55], s71 offen {opt.get('img_ld','')} lds")

    def AY(nA):
        a("s_lshr_b32 s71, s70, 5")
        a(f"s_mul_i32 s71, s71, {4*655360}")
        a("s_and_b32 s72, s70, 31")
        a(f"s_mul_i32 s72, s72, {SA}")
        a("s_add_u32 s71, s71, s72")
        for j in range(nA):
            a(f"s_add_u32 m0, s37, {j*1024}")
            a("s_nop 0")
            a.dma(f"buffer_load_dwordx4 v{28+j}, s[56:59], s71 offen {opt.get('img_ld','')} lds")

    def AO(nA):
        a("s_cmp_lt_u32 s70, 88")
        a("s_cselect_b32 s62, s48, 0")
        a("s_sub_u32 s71, s70, 64")
        a(f"s_mul_i32 s71, s71, {64*1280}")
        for j in range(nA):
            a(f"s_add_u32 m0, s37, {j*1024}")
            a("s_nop 0")
            a.dma(f"buffer_load_dwordx4 v{44+j}, s[60:63], s71 offen lds")

    def rep(pfx, fn, n, idx, adv, upto):
        lb = a.newlabel(pfx)
        a.label(lb)
        a(f"v_readlane_b32 s70, v52, {idx}")
        fn(n)
        adv()
        a(f"s_cmp_lt_u32 {idx}, {upto}")
        a(f"s_cbranch_scc1 {lb}")

    def gowait(lb):
        a(f"s_mov_b32 s88, {POLL_MAX*64}")
        a.label(lb)
        a("ds_read_b64 v[56:57], v54")
        a("s_waitcnt lgkmcnt(0)")
        a("v_readfirstlane_b32 s70, v57")
        a("s_sub_u32 s88, s88, 1")
        a("s_cmp_eq_u32 s88, 0")
        a(f"s_cbranch_scc1 {lb}_ok")
        a("s_cmp_lg_u32 s70, 0")
        a(f"s_cbranch_scc1 {lb}_ok")
        a("s_sleep 1")
        a(f"s_branch {lb}")
        a.label(f"{lb}_ok")
        a("v_mov_b32 v55, v56")
        stamp(a, opt, 2, 0)

    def loaderB(pfx, nB, nA):
        a(f"v_mov_b32 v54, {NON_O}")
        a("s_cmp_eq_u32 s31, 3")
        a(f"s_cbranch_scc1 .{pfx}_o")
        rep(pfx, BY, nB, "s76", advB, 3)
        a(f"s_waitcnt vmcnt({3*nB})")
        a("s_barrier")
        rep(pfx, BY, nB, "s76", advB, 5)
        a("s_barrier")
        gowait(f".{pfx}_go")
        rep(pfx, AY, nA, "s77", advA, 3)
        a(f"s_branch .{pfx}_main")
        a.label(f".{pfx}_o")
        a("s_waitcnt vmcnt(0)")
        a("s_barrier")
        rep(pfx, AO, nA, "s77", advA, 1)
        a("s_barrier")
        rep(pfx, AO, nA, "s77", advA, 3)
        gowait(f".{pfx}_goo")
        rep(pfx, BO, nB, "s76", advB, 5)
        a.label(f".{pfx}_main")
        sel4(a, "s79", "s31", NST)
        a("s_mov_b32 s78, 0")
        a.label(f".{pfx}_loop")
        a("s_cmp_ge_u32 s78, 3")
        a(f"s_cbranch_scc1 .{pfx}_w2")
        a(f"s_waitcnt vmcnt({4*nB})")
        a("s_cmp_eq_u32 s31, 3")
        a(f"s_cbranch_scc1 .{pfx}_w2")
        a(f"s_waitcnt vmcnt({2*nA})")
        a.label(f".{pfx}_w2")
        a(f"s_waitcnt vmcnt({2*(nA+nB)})")
        a("s_barrier")
        a("s_add_u32 s78, s78, 1")
        a("s_cmp_eq_u32 s78, s79")
        a("s_cbranch_scc1 .f_final")
        a("s_cmp_eq_u32 s78, 1")
        a(f"s_cbranch_scc1 .{pfx}_bd")
        a("v_readlane_b32 s70, v52, s76")
        a("s_cmp_lt_u32 s70, 64")
        a(f"s_cbranch_scc0 .{pfx}_bo")
        BY(nB)
        a(f"s_branch .{pfx}_bx")
        a.label(f".{pfx}_bo")
        BO(nB)
        a.label(f".{pfx}_bx")
        advB()
        a.label(f".{pfx}_bd")
        a("v_readlane_b32 s70, v52, s77")
        a("s_cmp_lt_u32 s70, 64")
        a(f"s_cbranch_scc0 .{pfx}_ao")
        AY(nA)
        advA()
        a(f"s_branch .{pfx}_loop")
        a.label(f".{pfx}_ao")
        AO(nA)
        advA()
        a(f"s_branch .{pfx}_loop")

    a(f"s_mul_i32 s70, s29, {128*1280}")
    for j in range(1, 16):
        a(f"v_add_u32 v{5+j}, {j*8*1280}, v5")
    a("s_mov_b32 s68, 0")
    a("s_mov_b32 s69, 0")
    a("s_mov_b32 s34, 0")
    a("s_mov_b32 s35, 0")
    a("s_waitcnt lgkmcnt(0)")
    stamp(a, opt, 0, 0)
    add64(a, "s80", "s81", "s4", "s5", "s70")
    srd(a, 80, "s80", "s81", 128 * 1280)
    a("v_mov_b32 v60, v20")
    loaderA("l0", [(80, (5 + j) if j < 15 else 60, "s41", j * 1024, "s43") for j in range(16)], 6, 6)
    loaderB("l0", 6, 6)

    a.label(".f_l12")
    a("s_sub_u32 s73, s28, 5")
    for j in range(3):
        a(f"v_add_u32 v54, {64*j}, v1")
        a("v_mul_u32_u24 v55, 43691, v54")
        a("v_lshrrev_b32 v55, 19, v55")
        a("v_mul_u32_u24 v56, 12, v55")
        a("v_sub_u32 v56, v54, v56")
        a("v_bfe_u32 v54, v55, 3, 1")
        a("v_lshlrev_b32 v54, 1, v54")
        a("v_xor_b32 v56, v56, v54")
        a("v_mul_u32_u24 v55, 3072, v55")
        a(f"v_lshl_add_u32 v{60+j}, v56, 4, v55")
    for j in range(3, 12):
        a(f"v_add_u32 v{60+j}, {(j//3)*16*3072}, v{60+j%3}")
    for j in range(1, 5):
        a(f"v_add_u32 v{5+j}, {j*8*1280}, v5")
    a(f"s_mul_i32 s68, s73, {UOFF-GOFF}")
    a(f"s_add_u32 s68, s68, {GOFF}")
    a("s_mul_i32 s69, s73, 5120")
    a(f"s_add_u32 s69, s69, {HOFF}")
    a("s_mul_i32 s34, s73, 5")
    a("s_add_u32 s34, s34, 6")
    a("s_mul_i32 s35, s73, 7")
    a("s_add_u32 s35, s35, 6")
    a("s_mul_i32 s70, s30, 192")
    a(f"s_sub_u32 s71, {640*3072}, s70")
    a("s_and_b32 s72, s30, 7")
    a("s_lshl_b32 s72, s72, 1")
    a("s_add_u32 s72, s72, s73")
    a(f"s_mul_i32 s72, s72, {40*1280}")
    a("s_waitcnt lgkmcnt(0)")
    stamp(a, opt, 0, 0)
    a("s_cmp_eq_u32 s73, 0")
    a("s_cselect_b32 s80, s16, s18")
    a("s_cselect_b32 s81, s17, s19")
    add64(a, "s80", "s81", "s80", "s81", "s70")
    srd(a, 80, "s80", "s81", "s71")
    a("s_cmp_lt_u32 s30, 8")
    a("s_cselect_b32 s84, s10, s12")
    a("s_cselect_b32 s85, s11, s13")
    add64(a, "s84", "s85", "s84", "s85", "s72")
    srd(a, 84, "s84", "s85", 40 * 1280)
    ins = []
    for j in range(12):
        ins.append((80, 60 + j, "s50", j * 1024, "s49"))
        if j % 2 == 1 and j // 2 < 5:
            ins.append((84, 5 + j // 2, "s51", (j // 2) * 1024, "s43"))
    loaderA("l1", ins, 5, 7)
    loaderB("l1", 5, 7)

    a.label(".f_aux")
    a.vq = []
    a.lq = []
    if opt.get("inv", 0):
        a("buffer_inv sc1")
    a("s_memrealtime s[70:71]")
    a("v_lshrrev_b32 v3, 3, v1")
    a("v_and_b32 v4, 7, v1")
    a("v_mul_u32_u24 v5, 1280, v3")
    a("v_lshl_add_u32 v5, v4, 4, v5")
    a("v_min_u32 v6, 59, v1")
    a("v_mul_u32_u24 v7, 43, v6")
    a("v_lshrrev_b32 v7, 9, v7")
    a("v_mul_u32_u24 v8, 12, v7")
    a("v_sub_u32 v8, v6, v8")
    a("v_mul_u32_u24 v6, 3072, v7")
    a("v_lshl_add_u32 v6, v8, 4, v6")
    a("v_mul_u32_u24 v7, 768, v7")
    a("v_lshl_add_u32 v7, v8, 5, v7")
    a(f"v_add_u32 v7, {WT_O}, v7")
    a("s_waitcnt lgkmcnt(0)")
    stamp(a, opt, 0, 0)
    srd(a, 36, "s24", "s25", 4)
    a("s_cmp_lg_u32 s2, 0")
    a("s_cbranch_scc1 .f_aux1")
    a("s_or_b32 s70, s70, 1")
    a("v_mov_b32 v9, s70")
    a("s_mov_b64 exec, 1")
    a("buffer_store_dword v9, off, s[36:39], 0 sc1")
    a("s_mov_b64 exec, -1")
    a.label(".f_aux1")
    if opt.get("ipf", 0):
        a("s_getpc_b64 s[72:73]")
        a.label(".f_pc")
        a(f"s_sub_u32 s72, s72, .f_pc-{name}")
        a("s_subb_u32 s73, s73, 0")
        a("v_lshlrev_b32 v10, 7, v1")
        for j in range(opt.get("ipf")):
            a(f"global_load_dword v11, v10, s[72:73]")
            a("v_add_u32 v10, 8192, v10")
    a("s_lshl_b32 s70, s29, 4")
    a("s_add_u32 s70, s70, s30")
    a(f"s_mul_i32 s70, s70, {8*1280}")
    add64(a, "s40", "s41", "s4", "s5", "s70")
    srd(a, 40, "s40", "s41", 8 * 1280)
    a("s_and_b32 s70, s30, 7")
    a("s_lshl_b32 s70, s70, 4")
    a("s_add_u32 s70, s70, s29")
    a(f"s_mul_i32 s70, s70, {5*1280}")
    a("s_cmp_lt_u32 s30, 8")
    a("s_cselect_b32 s44, s10, s12")
    a("s_cselect_b32 s45, s11, s13")
    add64(a, "s44", "s45", "s44", "s45", "s70")
    srd(a, 44, "s44", "s45", 5 * 1280)
    a("s_mul_i32 s70, s30, 192")
    a(f"s_mul_i32 s71, s29, {40*3072}")
    a("s_add_u32 s70, s70, s71")
    add64(a, "s48", "s49", "s16", "s17", "s70")
    srd(a, 48, "s48", "s49", 39 * 3072 + 192)
    add64(a, "s52", "s53", "s18", "s19", "s70")
    srd(a, 52, "s52", "s53", 39 * 3072 + 192)
    add64(a, "s56", "s57", "s26", "s27", STAT_OFF)
    srd(a, 56, "s56", "s57", 65536 + 262144)
    XR, HR, WR, XF = 12, 52, 92, 160
    early = opt.get("aux_early", 1)
    if not early:
        a("s_barrier")
    for t in range(8):
        a(f"v_add_u32 v10, {t*5*3072}, v6")
        a.dma(f"buffer_load_dwordx4 {vr(WR+4*t,4)}, v10, s[48:51], 0 offen", "wg")
        a.dma(f"buffer_load_dwordx4 {vr(WR+32+4*t,4)}, v10, s[52:55], 0 offen", "wu")
    for i in range(10):
        a.dma(f"buffer_load_dwordx4 {vr(XR+4*i,4)}, v5, s[40:43], 0 offen offset:{128*i}", "x")
    for i in range(10):
        a.dma(f"buffer_load_dwordx4 {vr(HR+4*i,4)}, v5, s[44:47], 0 offen offset:{128*i}", "h")
    a.vm("buffer_load_dword v9, off, s[36:39], 0 sc1", "non")
    a("s_barrier")
    if opt.get("tlb"):
        sh = opt["tlb"]
        srd(a, 60, "s26", "s27", 32 << 20)
        a(f"v_lshlrev_b32 v10, {sh}, v1")
        for j in range((32 << 20) >> (sh + 6)):
            a.vm(f"buffer_load_dword v250, v10, s[60:63], 0 offen sc1", "tlb")
            a(f"v_add_u32 v10, {64 << sh}, v10")
        a("v_lshlrev_b32 v10, 17, v1")
        for (lo, hi, n) in ((6, 7, 8 << 20), (8, 9, 8 << 20), (20, 21, 1536 * 1280), (22, 23, 2048 * 1280)):
            srd(a, 60, f"s{lo}", f"s{hi}", n)
            a.vm(f"buffer_load_dword v250, v10, s[60:63], 0 offen sc1", "tlb")
    a.vwait("wu")

    def wsum(mat):
        acc = XF + 8 * mat
        for t in range(8):
            for i in range(4):
                r = WR + 32 * mat + 4 * t + i
                d = (acc + 2 * i) if t == 0 else (XF + 16 + 2 * i)
                a(f"v_lshlrev_b32 v{d}, 16, v{r}")
                a(f"v_and_b32 v{d+1}, 0xffff0000, v{r}")
            if t:
                for i in range(4):
                    a(f"v_pk_add_f32 {vr(acc+2*i,2)}, {vr(acc+2*i,2)}, {vr(XF+16+2*i,2)}")
        a(f"ds_write_b128 v7, {vr(acc,4)} offset:{mat*384}")
        a(f"ds_write_b128 v7, {vr(acc+4,4)} offset:{mat*384+16}")
    wsum(0)
    a("s_barrier")
    wsum(1)
    a(f"v_lshlrev_b32 v8, 2, v1")
    a(f"v_add_u32 v8, {WT_O}, v8")
    a("s_waitcnt lgkmcnt(0)")
    for rr in range(5):
        for c in range(3):
            a(f"ds_read_b32 v{WR+3*rr+c}, v8 offset:{rr*768+c*256}")
    a.vwait("non")
    a(f"s_mov_b32 s88, {POLL_MAX}")
    a.label(".f_npoll")
    a("v_readfirstlane_b32 s34, v9")
    a("s_sub_u32 s88, s88, 1")
    a("s_cmp_eq_u32 s88, 0")
    a("s_cbranch_scc1 .f_nok")
    a("s_cmp_lg_u32 s34, 0")
    a("s_cbranch_scc1 .f_nok")
    a("s_sleep 4")
    a("buffer_load_dword v9, off, s[36:39], 0 sc1")
    a("s_waitcnt vmcnt(0)")
    a("s_branch .f_npoll")
    a.label(".f_nok")
    a("s_waitcnt lgkmcnt(0)")
    for rr in range(1, 5):
        for c in range(3):
            a(f"v_add_f32 v{WR+c}, v{WR+c}, v{WR+3*rr+c}")
    a(f"v_mov_b32 v{WR+3}, v9")
    a("s_lshl_b32 s70, s30, 4")
    a("s_add_u32 s70, s70, s29")
    a("s_lshl_b32 s70, s70, 10")
    a("s_add_u32 s70, s70, 65536")
    a("v_lshlrev_b32 v10, 4, v1")
    a.vm(f"buffer_store_dwordx4 {vr(WR,4)}, v10, s[56:59], s70 offen sc1", "st")
    a(f"v_mov_b32 v11, {NON_O}")
    a("ds_write_b32 v11, v9")
    a("v_mov_b32 v8, 0")
    a("ds_write_b32 v11, v8 offset:4")
    a("s_barrier")
    a.vwait("x")
    for i in range(40):
        a(f"v_lshlrev_b32 v{XF+2*i}, 16, v{XR+i}")
        a(f"v_and_b32 v{XF+2*i+1}, 0xffff0000, v{XR+i}")
    a(f"v_pk_add_f32 v[242:243], {vr(XF,2)}, {vr(XF+2,2)}")
    a(f"v_pk_add_f32 v[244:245], {vr(XF+4,2)}, {vr(XF+6,2)}")
    for i in range(4, 40):
        d = 242 + 2 * (i & 1)
        a(f"v_pk_add_f32 {vr(d,2)}, {vr(d,2)}, {vr(XF+2*i,2)}")
    a("v_pk_add_f32 v[242:243], v[242:243], v[244:245]")
    a("v_add_f32 v242, v242, v243")
    sum8(a, "v242")
    a(f"v_mul_f32 v242, {f32(-1.0/640)}, v242")
    a("s_barrier")
    for i in range(40):
        a(f"v_pk_add_f32 {vr(XF+2*i,2)}, {vr(XF+2*i,2)}, v[242:243] op_sel_hi:[1,0]")
    a(f"v_pk_mul_f32 v[244:245], {vr(XF,2)}, {vr(XF,2)}")
    a(f"v_pk_mul_f32 v[246:247], {vr(XF+2,2)}, {vr(XF+2,2)}")
    for i in range(2, 40):
        d = 244 + 2 * (i & 1)
        a(f"v_pk_fma_f32 {vr(d,2)}, {vr(XF+2*i,2)}, {vr(XF+2*i,2)}, {vr(d,2)}")
    a("v_pk_add_f32 v[244:245], v[244:245], v[246:247]")
    a("v_add_f32 v244, v244, v245")
    sum8(a, "v244")
    a(f"v_mul_f32 v244, {f32(1.0/640)}, v244")
    rn_bf16(a, "v242")
    rn_bf16(a, "v244")
    a(f"v_add_f32 v244, {f32(1e-5)}, v244")
    rn_bf16(a, "v244")
    a("v_sqrt_f32 v244, v244")
    a("s_nop 0")
    rn_bf16(a, "v244")
    a("v_rcp_f32 v243, v244")
    a("s_nop 0")
    a("v_fma_f32 v245, -v244, v243, 1.0")
    a("v_fma_f32 v243, v245, v243, v243")
    a("v_mul_f32 v244, v244, v244")
    a("v_mov_b32 v245, v9")
    a("s_lshl_b32 s70, s29, 4")
    a("s_add_u32 s70, s70, s30")
    a("s_lshl_b32 s70, s70, 7")
    a("v_lshlrev_b32 v11, 4, v3")
    a("s_mov_b32 s72, 0x01010101")
    a("s_mov_b32 s73, 0x01010101")
    a("s_mov_b64 exec, s[72:73]")
    a.vm("buffer_store_dwordx4 v[242:245], v11, s[56:59], s70 offen sc1", "st")
    a("s_mov_b64 exec, -1")
    a("s_barrier")
    a.vwait("h")
    for i in range(40):
        d = XF + 2 * (i % 4) if i >= 2 else 246 + 2 * i
        a(f"v_lshlrev_b32 v{d}, 16, v{HR+i}")
        a(f"v_and_b32 v{d+1}, 0xffff0000, v{HR+i}")
        if i >= 2:
            a(f"v_pk_add_f32 {vr(246+2*(i&1),2)}, {vr(246+2*(i&1),2)}, {vr(d,2)}")
    a("v_pk_add_f32 v[246:247], v[246:247], v[248:249]")
    a("v_add_f32 v246, v246, v247")
    sum8(a, "v246")
    a("v_mov_b32 v247, v9")
    a("s_lshl_b32 s70, s30, 10")
    a("s_mul_i32 s71, s29, 40")
    a("s_add_u32 s70, s70, s71")
    a("s_add_u32 s70, s70, 32768")
    a("v_lshlrev_b32 v11, 3, v3")
    a("s_mov_b32 s73, 0x01")
    a("s_mov_b64 exec, s[72:73]")
    a.vm("buffer_store_dwordx2 v[246:247], v11, s[56:59], s70 offen sc1", "st")
    a("s_mov_b64 exec, -1")
    stamp(a, opt, 3, 0)
    a("s_barrier")
    a("s_barrier")
    a("s_barrier")
    a("s_lshl_b32 s60, s29, 11")
    a("s_lshl_b32 s61, s30, 10")
    a("s_add_u32 s61, s61, 32768")
    a("s_lshl_b32 s62, s30, 14")
    a("s_add_u32 s62, s62, 65536")
    a("v_min_u32 v11, 39, v1")
    a("v_lshlrev_b32 v4, 4, v11")
    a(f"s_mov_b32 s88, {POLL_MAX}")

    def gather():
        a(f"buffer_load_dwordx4 v[12:15], v10, s[56:59], s60 offen sc1")
        a(f"buffer_load_dwordx4 v[16:19], v10, s[56:59], s60 offen offset:1024 sc1")
        a(f"buffer_load_dwordx4 v[20:23], v4, s[56:59], s61 offen sc1")
        a("s_mov_b32 s63, s62")
        for r in range(16):
            a(f"buffer_load_dwordx4 {vr(24+4*r,4)}, v10, s[56:59], s63 offen offset:{(r%4)*1024} sc1")
            if r % 4 == 3:
                a("s_add_u32 s63, s63, 4096")
    gather()
    a("s_barrier")
    a.label(".f_gchk")
    a("s_waitcnt vmcnt(0)")
    a("v_cmp_eq_u32 s[70:71], v9, v15")
    for r in [19, 21, 23] + [27 + 4 * r for r in range(16)]:
        a(f"v_cmp_eq_u32 vcc, v9, v{r}")
        a("s_and_b64 s[70:71], s[70:71], vcc")
    a("s_sub_u32 s88, s88, 1")
    a("s_cmp_eq_u32 s88, 0")
    a("s_cbranch_scc1 .f_gok")
    a("s_cmp_eq_u64 s[70:71], -1")
    a("s_cbranch_scc1 .f_gok")
    gather()
    a("s_branch .f_gchk")
    a.label(".f_gok")
    stamp(a, opt, 2, 1)
    for r in range(1, 16):
        a(f"v_pk_add_f32 v[24:25], v[24:25], {vr(24+4*r,2)}")
        a(f"v_add_f32 v26, v26, v{26+4*r}")
    a("v_lshlrev_b32 v8, 2, v1")
    a(f"v_add_u32 v8, {SCR}, v8")
    for c in range(3):
        a(f"ds_write_b32 v8, v{24+c} offset:{CS_O-SCR+256*c}")
    a("v_lshlrev_b32 v11, 3, v11")
    a(f"v_add_u32 v11, {SCR}, v11")
    a(f"ds_write_b32 v11, v20 offset:{CS_O-SCR+768}")
    a(f"ds_write_b32 v11, v22 offset:{CS_O-SCR+772}")
    a("s_cmp_lt_u32 s30, 8")
    a("s_cselect_b32 s70, 0, 0x80000000")
    a(f"v_add_u32 v10, {SCR}, v10")
    for hh in range(2):
        b = 12 + 4 * hh
        a(f"ds_write_b32 v8, v{b} offset:{M_O-SCR+256*hh}")
        a(f"v_xor_b32 v{28+hh}, s70, v{b+1}")
        a(f"ds_write_b32 v8, v{28+hh} offset:{R_O-SCR+256*hh}")
        a(f"v_mov_b32 v{b+3}, v{b+2}")
        a(f"v_mul_f32 v{b+2}, v{b+1}, v{b+1}")
        a(f"v_mul_f32 v{b+2}, v{b+2}, v{b+1}")
        a(f"v_mul_f32 v{b+2}, {f32(C2)}, v{b+2}")
        a(f"v_mul_f32 v{b+1}, {f32(C1)}, v{b+1}")
        a(f"ds_write_b128 v10, {vr(b,4)} offset:{1024*hh}")
    a("v_mov_b32 v55, v9")
    a("s_waitcnt lgkmcnt(0)")
    if early:
        a("s_barrier")
    a("s_barrier")
    def urange(p):
        u = [((st_ >> 5) * 16 + ((st_ & 31) >> 1)) for (b, L) in segs[p] for st_ in range(b, b + L) if st_ < 64]
        assert not u or max(u) - min(u) < 16
        return (min(u), max(u)) if u else (0, 0)
    add64(a, "s80", "s81", "s26", "s27", FLAG_OFF)
    srd(a, 80, "s80", "s81", 8192)
    sel4(a, "s70", "s31", [urange(p)[0] for p in range(4)])
    sel4(a, "s71", "s31", [urange(p)[1] for p in range(4)])
    a("v_lshrrev_b32 v53, 2, v1")
    a("v_add_u32 v53, s70, v53")
    a("v_min_u32 v53, s71, v53")
    a("v_and_b32 v54, 3, v1")
    a("v_lshlrev_b32 v54, 3, v54")
    a("v_lshl_add_u32 v53, v53, 5, v54")
    a("s_lshl_b32 s70, s32, 10")
    a("v_add_u32 v53, s70, v53")
    a("v_and_b32 v54, 31, v1")
    a("s_lshl_b32 s70, s29, 8")
    a("s_add_u32 s70, s70, 4096")
    a("v_lshl_add_u32 v54, v54, 3, s70")
    a("s_cmp_eq_u32 s31, 3")
    a("s_cselect_b64 vcc, -1, 0")
    a("v_cndmask_b32 v53, v53, v54, vcc")

    def fpoll(lb, va):
        a(f"s_mov_b32 s88, {POLL_MAX}")
        a.label(lb)
        a(f"buffer_load_dwordx2 v[56:57], {va}, s[80:83], 0 offen sc1")
        a("s_waitcnt vmcnt(0)")
        a("v_cmp_eq_u32 vcc, v55, v56")
        a("v_cmp_eq_u32 s[70:71], v55, v57")
        a("s_and_b64 vcc, vcc, s[70:71]")
        a("s_sub_u32 s88, s88, 1")
        a("s_cmp_eq_u32 s88, 0")
        a(f"s_cbranch_scc1 {lb}_ok")
        a("s_cmp_eq_u64 vcc, -1")
        a(f"s_cbranch_scc1 {lb}_ok")
        a(f"s_sleep {opt.get('poll_sleep', 4)}")
        a(f"s_branch {lb}")
        a.label(f"{lb}_ok")
    a(f"s_sleep {opt.get('poll_delay', 40)}")
    fpoll(".f_fpoll", "v53")
    a(f"v_mov_b32 v11, {NON_O}")
    a("ds_write_b32 v11, v55 offset:4")
    sel4(a, "s79", "s31", NST)
    a("s_cmp_lg_u32 s31, 2")
    a("s_cbranch_scc1 .f_auxb")
    hp = segs[2][0][1] - 5
    for _ in range(hp):
        a("s_barrier")
    a(f"s_sub_u32 s79, s79, {hp}")
    fpoll(".f_hpoll", "v54")
    a.label(".f_auxb")
    a("s_barrier")
    a("s_sub_u32 s79, s79, 1")
    a("s_cmp_lg_u32 s79, 0")
    a("s_cbranch_scc1 .f_auxb")

    a.label(".f_final")
    a.vq = []
    a("s_sub_u32 s34, s28, 4")
    a("s_and_b32 s35, s34, 1")
    a("s_lshr_b32 s36, s34, 1")
    a("s_lshl_b32 s70, s29, 2")
    a("s_add_u32 s70, s70, s32")
    a("s_lshl_b32 s70, s70, 2")
    a("s_add_u32 s70, s70, s31")
    a("s_lshl_b32 s70, s70, 2")
    a("s_add_u32 s70, s70, s34")
    a("s_mul_i32 s70, s70, 20480")
    a(f"s_add_u32 s70, s70, {XCH_OFF}")
    add64(a, "s40", "s41", "s26", "s27", "s70")
    srd(a, 40, "s40", "s41", 20480)
    a("s_lshl_b32 s70, s29, 3")
    a("s_lshl_b32 s71, s35, 2")
    a("s_add_u32 s70, s70, s71")
    a("s_add_u32 s70, s70, s31")
    a(f"s_mul_i32 s70, s70, {16*1280}")
    a("s_mul_i32 s71, s32, 320")
    a("s_add_u32 s70, s70, s71")
    a("s_mul_i32 s71, s36, 160")
    a("s_add_u32 s70, s70, s71")
    add64(a, "s44", "s45", "s4", "s5", "s70")
    srd(a, 44, "s44", "s45", 15 * 1280 + 160)
    add64(a, "s48", "s49", "s22", "s23", "s70")
    srd(a, 48, "s48", "s49", 15 * 1280 + 160)
    a("v_and_b32 v2, 15, v1")
    a("v_lshrrev_b32 v3, 4, v1")
    a("v_mul_u32_u24 v2, 1280, v2")
    a("v_lshl_add_u32 v2, v3, 3, v2")
    a("v_lshlrev_b32 v3, 4, v1")
    a("v_lshlrev_b32 v4, 3, v1")
    for e in range(5):
        a(f"buffer_load_dwordx2 {vr(60+2*e,2)}, v2, s[44:47], 0 offen offset:{32*e}")
    for k in range(1, 5):
        a(f"s_mov_b32 s{51+k}, {4096*k}")
    MB = 80

    def mreg(k, t):
        return MB + 16 * k + (t // 3) * 4 + t % 3

    def mpoll(kinds, lb):
        a(f"s_mov_b32 s88, {POLL_MAX}")
        if opt.get("cheap", 1):
            a(f"v_min_u32 v5, {len(kinds)-1}, v1")
            a(f"v_lshlrev_b32 v5, 12, v5")
            a(f"v_add_u32 v5, {kinds[0]*4096+3072+508}, v5")
            a.label(lb + "_c")
            a(f"buffer_load_dword v{MB+16*kinds[0]}, v5, s[40:43], 0 offen sc1")
            a("s_waitcnt vmcnt(0)")
            a(f"v_cmp_eq_u32 vcc, v55, v{MB+16*kinds[0]}")
            a("s_sub_u32 s88, s88, 1")
            a("s_cmp_eq_u32 s88, 0")
            a(f"s_cbranch_scc1 {lb}")
            a("s_cmp_eq_u64 vcc, -1")
            a(f"s_cbranch_scc1 {lb}")
            a(f"s_sleep {opt.get('fin_sleep', 2)}")
            a(f"s_branch {lb}_c")
        a.label(lb)
        for k in kinds:
            so = f"s{51+k}" if k else "0"
            for c in range(3):
                a(f"buffer_load_dwordx4 {vr(MB+16*k+4*c,4)}, v3, s[40:43], {so} offen offset:{1024*c} sc1")
            a(f"buffer_load_dwordx2 {vr(MB+16*k+12,2)}, v4, s[40:43], {so} offen offset:3072 sc1")
        a("s_waitcnt vmcnt(0)")
        first = True
        for k in kinds:
            for r in (3, 7, 11, 13):
                if first:
                    a(f"v_cmp_eq_u32 s[70:71], v55, v{MB+16*k+r}")
                    first = False
                else:
                    a(f"v_cmp_eq_u32 vcc, v55, v{MB+16*k+r}")
                    a("s_and_b64 s[70:71], s[70:71], vcc")
        a("s_sub_u32 s88, s88, 1")
        a("s_cmp_le_i32 s88, 0")
        a(f"s_cbranch_scc1 {lb}_ok")
        a("s_cmp_eq_u64 s[70:71], -1")
        a(f"s_cbranch_scc1 {lb}_ok")
        a(f"s_sleep {opt.get('fin_sleep', 2)}")
        a(f"s_branch {lb}")
        a.label(f"{lb}_ok")

    def unp(d, r):
        a(f"v_lshlrev_b32 v{d}, 16, v{r}")
        a(f"v_and_b32 v{d+1}, 0xffff0000, v{r}")
    a(f"v_mov_b32 v6, {f32(-LOG2E)}")
    a("v_mov_b32 v7, 1.0")
    mpoll([3, 4], ".f_mo")
    for t in range(10):
        T = 8 + 8 * (t & 1)
        unp(T, mreg(3, t))
        unp(T + 2, mreg(4, t))
        a(f"v_pk_add_f32 {vr(T,2)}, {vr(T,2)}, {vr(T+2,2)}")
        a(f"v_cvt_pk_bf16_f32 v{T+4}, v{T}, v{T+1}")
        unp(T, T + 4)
        a(f"v_pk_mul_f32 {vr(T+2,2)}, {vr(T,2)}, v[6:7] op_sel_hi:[1,0]")
        a(f"v_exp_f32 v{T+2}, v{T+2}")
        a(f"v_exp_f32 v{T+3}, v{T+3}")
        a("s_nop 0")
        a(f"v_pk_add_f32 {vr(T+2,2)}, {vr(T+2,2)}, v[6:7] op_sel:[0,1]")
        a(f"v_rcp_f32 v{T+2}, v{T+2}")
        a(f"v_rcp_f32 v{T+3}, v{T+3}")
        a("s_nop 0")
        a(f"v_pk_mul_f32 {vr(T,2)}, {vr(T,2)}, {vr(T+2,2)}")
        a(f"v_cvt_pk_bf16_f32 v{T+4}, v{T}, v{T+1}")
        unp(30 + 2 * t, T + 4)
        unp(160 + 2 * t, 60 + t)
    stamp(a, opt, 2, 2)
    mpoll([0, 1, 2], ".f_my")
    stamp(a, opt, 2, 3)
    for t in range(10):
        T = 8 + 8 * (t & 1)
        unp(T, mreg(0, t))
        unp(T + 2, mreg(1, t))
        unp(T + 4, mreg(2, t))
        a(f"v_pk_add_f32 {vr(T,2)}, {vr(T,2)}, {vr(T+2,2)}")
        a(f"v_pk_add_f32 {vr(T,2)}, {vr(T,2)}, {vr(T+4,2)}")
        a(f"v_cvt_pk_bf16_f32 v{T+6}, v{T}, v{T+1}")
        unp(T, T + 6)
        a(f"v_pk_mul_f32 {vr(T,2)}, {vr(T,2)}, {vr(30+2*t,2)}")
        a(f"v_cvt_pk_bf16_f32 v{T+6}, v{T}, v{T+1}")
        unp(T, T + 6)
        a(f"v_pk_add_f32 {vr(T,2)}, {vr(T,2)}, {vr(160+2*t,2)}")
        a(f"v_cvt_pk_bf16_f32 v{60+t}, v{T}, v{T+1}")
        if t & 1:
            a(f"buffer_store_dwordx2 {vr(60+t-1,2)}, v2, s[48:51], 0 offen offset:{32*(t//2)}")
    stamp(a, opt, 1, 3)
    a("s_endpgm")

    a.label(".f_cons")
    a.vq = []
    a.lq = []
    if opt.get("prio", 0):
        a(f"s_setprio {opt['prio']}")
    a("s_and_b32 s34, s28, 1")
    a("s_lshr_b32 s35, s28, 1")
    vX = [[2, 3], [4, 5]]
    vH, vS, vW = [6, 7], [8, 9], [10, 11]
    FR = 12
    fX = [[FR + st * 52 + 4 * i for i in range(4)] for st in range(2)]
    fF = [[FR + st * 52 + 16 + 4 * k for k in range(9)] for st in range(2)]
    AC = 116
    accG = lambda j, u, i: AC + ((j * 2 + u) * 4 + i) * 4
    accH = lambda k, i: AC + 96 + (k * 4 + i) * 4
    a("v_and_b32 v12, 15, v1")
    a("v_lshlrev_b32 v12, 7, v12")
    a("v_lshrrev_b32 v14, 4, v1")
    a("v_and_b32 v13, 7, v1")
    a("v_xor_b32 v13, v13, v14")
    a("v_lshl_add_u32 v12, v13, 4, v12")
    a("v_xor_b32 v13, 64, v12")
    a("s_lshl_b32 s40, s34, 13")
    a("s_lshl_b32 s41, s35, 12")
    a("s_add_u32 s42, s40, s41")
    a(f"s_add_u32 s42, s42, {2*SSA}")
    a("s_xor_b32 s43, s41, 4096")
    a("s_add_u32 s43, s43, s40")
    a(f"s_add_u32 s43, s43, {2*SSA}")
    a(f"s_add_u32 s41, s41, {2*SSA+HOFF}")
    for kh in range(2):
        a(f"v_add_u32 v{vX[kh][0]}, s42, v{12+kh}")
        a(f"v_add_u32 v{vX[kh][1]}, s43, v{12+kh}")
        a(f"v_add_u32 v{vH[kh]}, s41, v{12+kh}")
        a(f"v_add_u32 v{vS[kh]}, {2*SSA+HOFF+8192}, v{12+kh}")

    def trbase(dst, pitch, nblk, off):
        a("v_bfe_u32 v15, v1, 2, 2")
        a("v_lshl_add_u32 v15, v14, 3, v15")
        a(f"v_mul_u32_u24 v15, {pitch}, v15")
        a("v_and_b32 v16, 3, v1")
        a("v_lshl_add_u32 v15, v16, 3, v15")
        a("v_and_b32 v16, 1, v14")
        a(f"s_mul_i32 s40, s35, {nblk}")
        for par in range(2):
            a(f"v_xor_b32 v17, s40, v16")
            a(f"v_lshl_add_u32 v{dst[par]}, v17, 5, v15")
            a(f"v_add_u32 v{dst[par]}, {off - 32*par}, v{dst[par]}")
            a("s_add_u32 s40, s40, 1")
    trbase(vW, 192, 3, 2 * SSA + GOFF)
    for i in range(136):
        a(f"v_mov_b32 v{AC+i}, 0")
    a("s_waitcnt lgkmcnt(0)")
    stamp(a, opt, 0, 0)
    a(f"s_mul_i32 s40, s29, {24*16384}")
    a("s_lshl_b32 s41, s34, 12")
    a("s_add_u32 s40, s40, s41")
    a(f"s_add_u32 s40, s40, {HIMG_OFF}")
    add64(a, "s44", "s45", "s26", "s27", "s40")
    srd(a, 44, "s44", "s45", 24 * 16384)
    a("s_mul_i32 s40, s30, 6")
    a("s_mul_i32 s41, s35, 3")
    a("s_add_u32 s40, s40, s41")
    for j in range(3):
        a(f"s_lshr_b32 s{56+j}, s40, 1")
        a(f"s_lshl_b32 s{56+j}, s{56+j}, 13")
        a("s_and_b32 s41, s40, 1")
        a("s_lshl_b32 s41, s41, 9")
        a(f"s_add_u32 s{56+j}, s{56+j}, s41")
        a("s_add_u32 s40, s40, 1")
    a("s_lshr_b32 s40, s30, 1")
    a("s_mul_i32 s40, s40, 655360")
    a("s_lshl_b32 s41, s29, 1")
    a("s_add_u32 s41, s41, s34")
    a(f"s_mul_i32 s41, s41, {SA}")
    a("s_add_u32 s40, s40, s41")
    a("s_and_b32 s41, s30, 1")
    a("s_mul_i32 s41, s41, 5120")
    a("s_add_u32 s40, s40, s41")
    a(f"s_add_u32 s40, s40, {AIMG_OFF}")
    add64(a, "s48", "s49", "s26", "s27", "s40")
    srd(a, 48, "s48", "s49", 10240 + 5120)
    a("s_lshl_b32 s59, s35, 11")
    a("s_mov_b32 s60, 4096")
    add64(a, "s52", "s53", "s26", "s27", FLAG_OFF)
    srd(a, 52, "s52", "s53", 8192)
    a("s_bfe_u32 s61, s30, 0x20001")
    a("s_lshl_b32 s61, s61, 10")
    a("s_lshr_b32 s41, s30, 3")
    a("s_lshl_b32 s41, s41, 9")
    a("s_add_u32 s61, s61, s41")
    a("s_lshl_b32 s41, s29, 5")
    a("s_add_u32 s61, s61, s41")
    a("s_and_b32 s41, s30, 1")
    a("s_lshl_b32 s41, s41, 4")
    a("s_add_u32 s61, s61, s41")
    a("s_lshl_b32 s41, s28, 2")
    a("s_add_u32 s61, s61, s41")
    a("s_lshl_b32 s62, s29, 8")
    a("s_add_u32 s62, s62, s41")
    a("s_lshl_b32 s41, s30, 4")
    a("s_add_u32 s62, s62, s41")
    a("s_add_u32 s62, s62, 4096")

    def rdA(st, kh):
        r = []

        def F(k):
            if k < 6:
                j, u = k >> 1, k & 1
                for hf in range(2):
                    r.append((f"ds_read_b64_tr_b16 {vr(fF[st][k]+2*hf,2)}, v{vW[j&1]} offset:{j*32+kh*6144+hf*768+u*(UOFF-GOFF)}", ("F", st, k)))
            elif k < 8:
                r.append((f"ds_read_b128 {vr(fF[st][k],4)}, v{vH[kh]} offset:{(k-6)*2048}", ("F", st, k)))
            else:
                r.append((f"ds_read_b128 {vr(fF[st][k],4)}, v{vS[kh]}", ("F", st, k)))
        F(0)
        for i in range(4):
            r.append((f"ds_read_b128 {vr(fX[st][i],4)}, v{vX[kh][i>>1]} offset:{(i&1)*2048}", ("X", st, i)))
        for k in range(1, 9):
            F(k)
        return r

    def mfA(st):
        m = []
        for k in range(9):
            for i in range(4 if k < 8 else 2):
                if k < 6:
                    c = vr(accG(k >> 1, k & 1, i), 4)
                    t = f"v_mfma_f32_16x16x32_bf16 {c}, {vr(fF[st][k],4)}, {vr(fX[st][i],4)}, {c}"
                else:
                    c = vr(accH(k - 6, i), 4)
                    t = f"v_mfma_f32_16x16x32_bf16 {c}, {vr(fX[st][i],4)}, {vr(fF[st][k],4)}, {c}"
                m.append((t, [("F", st, k), ("X", st, i)]))
        return m
    a("s_mov_b32 s36, 2")
    a("s_mov_b32 s37, 9")
    a(f"s_mov_b32 s39, {SSA}")
    a("s_barrier")
    stamp(a, opt, 0, 1)
    if not opt.get("no_rd"):
        for t, tag in rdA(0, 0):
            a.lds(t, tag)
    lq0 = list(a.lq)
    a.label(".f_aloop")
    sal = ["s_add_u32 s36, s36, 1",
           "s_cmp_eq_u32 s36, 3",
           f"s_cselect_b32 s38, {(-2*SSA) & 0xffffffff}, s39",
           "s_cselect_b32 s36, 0, s36",
           "s_sub_u32 s37, s37, 1"]
    for s_ in sal:
        a(s_)
    step(a, opt, mfA(0), rdA(1, 1), [f"v_add_u32 v{r}, s38, v{r}" for r in range(2, 12)])
    step(a, opt, mfA(1), rdA(0, 0), ["s_cmp_lg_u32 s37, 0"], barrier=True)
    a.lq = list(lq0)
    a("s_cbranch_scc1 .f_aloop")
    step(a, opt, mfA(0), rdA(1, 1))
    pre = ["v_lshrrev_b32 v2, 4, v1",
           "v_lshlrev_b32 v2, 4, v2",
           "s_lshl_b32 s40, s34, 8",
           "s_lshl_b32 s41, s35, 7",
           "s_add_u32 s42, s40, s41",
           f"s_add_u32 s42, s42, {SCR}",
           "s_xor_b32 s43, s42, 128",
           "v_add_u32 v3, s43, v2",
           "v_add_u32 v2, s42, v2",
           "v_and_b32 v4, 15, v1",
           f"s_add_u32 s41, s41, {SCR}",
           "v_lshl_add_u32 v5, v4, 2, s41",
           "v_lshlrev_b32 v6, 2, v4",
           f"v_add_u32 v6, {SCR}, v6",
           f"v_mov_b32 v7, {NON_O}"]
    for p_ in pre:
        a(p_)
    rs = []
    for i in range(4):
        rs.append((f"ds_read_b128 {vr(12+8*i,4)}, v{2+(i>>1)} offset:{M_O-SCR+(i&1)*64}", "st"))
        rs.append((f"ds_read_b128 {vr(16+8*i,4)}, v{2+(i>>1)} offset:{R_O-SCR+(i&1)*64}", "st"))
    rs.append((f"ds_read_b32 v44, v5 offset:{CS_O-SCR+768}", "st"))
    rs.append((f"ds_read_b32 v45, v5 offset:{CS_O-SCR+768+64}", "st"))
    rs.append((f"ds_read_b32 v46, v6 offset:{CS_O-SCR+768+256}", "st"))
    rs.append((f"ds_read_b32 v47, v7", "st"))
    nord = opt.pop("no_rd", None)
    step(a, opt, mfA(1), rs, barrier=True)
    if nord:
        opt["no_rd"] = nord
    stamp(a, opt, 0, 2)
    a("v_lshlrev_b32 v8, 4, v4")
    a("s_lshl_b32 s40, s34, 10")
    a("s_lshl_b32 s41, s35, 9")
    a("s_add_u32 s42, s40, s41")
    a(f"s_add_u32 s42, s42, {SCR}")
    a("s_xor_b32 s43, s42, 512")
    a("v_add_u32 v9, s42, v8")
    a("v_add_u32 v10, s43, v8")
    for i in range(4):
        a.lds(f"ds_read_b128 {vr(64+4*i,4)}, v{9+(i>>1)} offset:{(i&1)*256}", "t4")
    a("v_lshrrev_b32 v11, 4, v1")
    a("s_mul_i32 s40, s35, 192")
    a(f"s_add_u32 s40, s40, {CS_O}")
    a("v_lshl_add_u32 v9, v11, 4, s40")
    for j in range(3):
        for u in range(2):
            a.lds(f"ds_read_b128 {vr(80+8*j+4*u,4)}, v9 offset:{j*64+u*384}", "t4")
    a("v_lshrrev_b32 v9, 1, v11")
    a("v_lshl_add_u32 v8, v9, 8, v8")
    a("v_and_b32 v9, 1, v11")
    a("v_lshl_add_u32 v10, v9, 9, v8")
    a("v_lshl_add_u32 v8, v9, 10, v8")
    a("s_mul_i32 s40, s35, 10240")
    a("s_sub_u32 s41, 10240, s40")
    a("v_add_u32 v2, s40, v10")
    a("v_add_u32 v3, s41, v10")
    a("s_lshl_b32 s40, s35, 11")
    a("s_xor_b32 s41, s40, 2048")
    a("v_add_u32 v4, s40, v8")
    a("v_add_u32 v5, s41, v8")
    a.lwait("st")
    a("s_nop 3")
    ST = opt.get("st", "sc1")

    def pack_store(c, txt, tag):
        for h2 in range(4):
            a(f"v_cvt_pk_bf16_f32 v{c+h2}, v{c+2*h2}, v{c+2*h2+1}")
        a("s_nop 0")
        a(f"v_permlane16_swap_b32 v{c}, v{c+2}")
        a("s_nop 0")
        a(f"v_permlane16_swap_b32 v{c+1}, v{c+3}")
        a.vm(f"buffer_store_dwordx4 {vr(c,4)}, {txt} {ST}", tag)
    for k in range(3):
        for p in range(2 if k < 2 else 1):
            c = accH(k, 2 * p)
            csr = 44 + k
            cp, sel = (csr, 0) if csr % 2 == 0 else (csr - 1, 1)
            for h2 in range(4):
                a(f"v_pk_fma_f32 {vr(c+2*h2,2)}, {vr(12+16*p+8*(h2>>1)+2*(h2&1),2)}, {vr(cp,2)}, {vr(c+2*h2,2)} op_sel:[0,{sel},0] op_sel_hi:[1,{sel},1]")
            for h2 in range(4):
                a(f"v_pk_mul_f32 {vr(c+2*h2,2)}, {vr(c+2*h2,2)}, {vr(16+16*p+8*(h2>>1)+2*(h2&1),2)}")
            so = "s59" if k < 2 else "s60"
            pack_store(c, f"v{2+p}, s[48:51], {so} offen offset:{(k&1)*1024}", "ab")

    def flag(so):
        a("s_mov_b64 exec, 1")
        a.vm(f"buffer_store_dword v47, off, s[52:55], {so} sc1", "fl")
        a("s_mov_b64 exec, -1")
    a.lwait("t4")
    T = [12, 14, 16, 18]
    nb = 0
    for j in range(3):
        for p in range(2):
            prs = [(2 * p + e, h2) for e in range(2) for h2 in range(2)]
            G = [vr(accG(j, 0, i) + 2 * h2, 2) for (i, h2) in prs]
            U = [vr(accG(j, 1, i) + 2 * h2, 2) for (i, h2) in prs]
            for n, (i, h2) in enumerate(prs):
                a(f"v_pk_fma_f32 {G[n]}, {vr(80+8*j+2*h2,2)}, {vr(64+4*i,2)}, {G[n]} op_sel_hi:[1,0,1]")
            for n, (i, h2) in enumerate(prs):
                a(f"v_pk_mul_f32 {vr(T[n],2)}, {G[n]}, {G[n]}")
            for n, (i, h2) in enumerate(prs):
                a(f"v_pk_fma_f32 {vr(T[n],2)}, {vr(T[n],2)}, {vr(64+4*i+2,2)}, {vr(64+4*i,2)} op_sel:[0,0,1] op_sel_hi:[1,0,1]")
            for n in range(4):
                a(f"v_pk_mul_f32 {vr(T[n],2)}, {vr(T[n],2)}, {G[n]}")
            for n in range(4):
                a(f"v_exp_f32 v{T[n]}, v{T[n]}")
                a(f"v_exp_f32 v{T[n]+1}, v{T[n]+1}")
            for n, (i, h2) in enumerate(prs):
                a(f"v_pk_fma_f32 {U[n]}, {vr(84+8*j+2*h2,2)}, {vr(64+4*i,2)}, {U[n]} op_sel_hi:[1,0,1]")
            for n, (i, h2) in enumerate(prs):
                a(f"v_pk_fma_f32 {vr(T[n],2)}, {vr(T[n],2)}, {vr(64+4*i+2,2)}, {vr(64+4*i+2,2)} op_sel:[0,1,1] op_sel_hi:[1,1,1]")
            for n in range(4):
                a(f"v_rcp_f32 v{T[n]}, v{T[n]}")
                a(f"v_rcp_f32 v{T[n]+1}, v{T[n]+1}")
            for n in range(4):
                a(f"v_pk_mul_f32 {G[n]}, {G[n]}, {U[n]}")
            for n in range(4):
                a(f"v_pk_mul_f32 {G[n]}, {G[n]}, {vr(T[n],2)}")
            pack_store(accG(j, 0, 2 * p), f"v{4+p}, s[44:47], s{56+j} offen", "h")
            nb += 1
            if nb == opt.get("abflag_at", 2):
                a.vwait("ab")
                flag("s61")
    stamp(a, opt, 0, 3)

    vA, vB, vD, vG = 2, [3, 4], [5, 6], 7
    TAG = 8
    gA = [[12 + st * 36 + 4 * m for m in range(5)] for st in range(2)]
    gB = [[12 + st * 36 + 20 + 4 * b for b in range(4)] for st in range(2)]
    ACY, ACO = 84, 164
    a(f"v_mov_b32 v{TAG}, v47")
    a("v_lshrrev_b32 v14, 4, v1")
    a("v_and_b32 v12, 15, v1")
    a("v_lshlrev_b32 v12, 7, v12")
    a("v_and_b32 v13, 7, v1")
    a("v_xor_b32 v13, v13, v14")
    a("v_lshl_add_u32 v12, v13, 4, v12")
    a("s_lshl_b32 s40, s34, 13")
    a(f"v_add_u32 v{vB[0]}, s40, v12")
    a(f"v_xor_b32 v{vB[1]}, 64, v{vB[0]}")
    a("s_mul_i32 s40, s35, 5120")
    a(f"s_add_u32 s40, s40, {RA0}")
    a(f"v_lshl_add_u32 v{vA}, v1, 4, s40")
    a("s_lshl_b32 s40, s34, 12")
    a(f"v_lshl_add_u32 v{vG}, v1, 4, s40")
    trbase(vD, 320, 5, RA0)
    a("s_lshl_b32 s40, s29, 2")
    a("s_add_u32 s40, s40, s32")
    a("s_lshl_b32 s40, s40, 4")
    a("s_add_u32 s40, s40, s28")
    a("s_mul_i32 s40, s40, 20480")
    a(f"s_add_u32 s40, s40, {XCH_OFF}")
    add64(a, "s64", "s65", "s26", "s27", "s40")
    srd(a, 64, "s64", "s65", 4 * 81920)
    a("v_lshlrev_b32 v9, 4, v1")
    a("v_lshlrev_b32 v10, 3, v1")
    a.vwait_all()
    a("s_mov_b64 exec, 1")
    a(f"buffer_store_dword v{TAG}, off, s[52:55], s62 sc1")
    a("s_mov_b64 exec, -1")
    for i in range(160):
        a(f"v_mov_b32 v{ACY+i}, 0")
    a("s_mov_b32 s36, 0")
    a("s_mov_b32 s37, 0")
    a(f"s_mov_b32 s40, {SA}")
    a(f"s_mov_b32 s41, {SB}")

    def rdB(ty, st, kh):
        r = []

        def A(m):
            if ty == "Y":
                r.append((f"ds_read_b128 {vr(gA[st][m],4)}, v{vA} offset:{kh*10240+m*1024}", ("A", st, m)))
            else:
                for hf in range(2):
                    r.append((f"ds_read_b64_tr_b16 {vr(gA[st][m]+2*hf,2)}, v{vD[m&1]} offset:{m*32+kh*10240+hf*1280}", ("A", st, m)))
        A(0)
        for b in range(4):
            if ty == "Y":
                r.append((f"ds_read_b128 {vr(gB[st][b],4)}, v{vB[kh]} offset:{b*2048}", ("B", st, b)))
            else:
                r.append((f"ds_read_b128 {vr(gB[st][b],4)}, v{vG} offset:{kh*8192+b*1024}", ("B", st, b)))
        for m in range(1, 5):
            A(m)
        return r

    def mfB(ty, st):
        base = ACY if ty == "Y" else ACO
        m_ = []
        for m in range(5):
            for b in range(4):
                c = vr(base + (b * 5 + m) * 4, 4)
                m_.append((f"v_mfma_f32_16x16x32_bf16 {c}, {vr(gA[st][m],4)}, {vr(gB[st][b],4)}, {c}", [("A", st, m), ("B", st, b)]))
        return m_

    def body(ty, nxt, tail=()):
        a.lq = [] if opt.get("no_rd") else [tag for _, tag in rdB(ty, 0, 0)]
        if nxt:
            for s_ in ["s_add_u32 s36, s36, 1",
                       f"s_cmp_eq_u32 s36, {NSA}",
                       f"s_cselect_b32 s38, {(-(NSA-1)*SA) & 0xffffffff}, s40",
                       "s_cselect_b32 s36, 0, s36",
                       "s_add_u32 s37, s37, 1",
                       f"s_cmp_eq_u32 s37, {NSB}",
                       f"s_cselect_b32 s39, {(-(NSB-1)*SB) & 0xffffffff}, s41",
                       "s_cselect_b32 s37, 0, s37"]:
                a(s_)
            upd = [f"v_add_u32 v{r}, s38, v{r}" for r in (vA, vD[0], vD[1])] + [f"v_add_u32 v{r}, s39, v{r}" for r in (vB[0], vB[1], vG)]
            step(a, opt, mfB(ty, 0), rdB(ty, 1, 1), upd)
            step(a, opt, mfB(ty, 1), rdB(nxt, 0, 0), tail, barrier=True)
        else:
            step(a, opt, mfB(ty, 0), rdB(ty, 1, 1))
            step(a, opt, mfB(ty, 1), [])

    def loop(ty, lb):
        a.label(lb)
        body(ty, ty, ["s_sub_u32 s42, s42, 1", "s_cmp_lg_u32 s42, 0"])
        a(f"s_cbranch_scc1 {lb}")

    def send(ty):
        base = ACY if ty == "Y" else ACO
        a("s_nop 7")
        for b in range(4):
            r0 = base + b * 20
            for t in range(10):
                a(f"v_cvt_pk_bf16_f32 v{r0+(t//3)*4+t%3}, v{r0+2*t}, v{r0+2*t+1}")
                if t % 3 == 2:
                    a(f"v_mov_b32 v{r0+(t//3)*4+3}, v{TAG}")
                    a(f"buffer_store_dwordx4 {vr(r0+(t//3)*4,4)}, v9, s[64:67], s43 offen offset:{(t//3)*1024} sc1")
            a(f"v_mov_b32 v{r0+13}, v{TAG}")
            a(f"buffer_store_dwordx2 {vr(r0+12,2)}, v10, s[64:67], s43 offen offset:3072 sc1")
            a("s_add_u32 s43, s43, 81920")

    def first(ty):
        a("s_barrier")
        stamp(a, opt, 1, 0)
        if not opt.get("no_rd"):
            for t, tag in rdB(ty, 0, 0):
                a.lds(t, tag)
    a("s_cmp_eq_u32 s31, 3")
    a("s_cbranch_scc1 .f_cO")
    first("Y")
    sel4(a, "s42", "s31", [NST[0] - 1, NST[1] - 1, segs[2][0][1] - 1, 0])
    a("s_mov_b32 s63, s31")
    loop("Y", ".f_yloop")
    a("s_cmp_eq_u32 s63, 2")
    a("s_cbranch_scc1 .f_yo")
    body("Y", None)
    stamp(a, opt, 1, 1)
    a("s_lshl_b32 s43, s31, 12")
    send("Y")
    stamp(a, opt, 1, 2)
    a("s_endpgm")
    a.label(".f_yo")
    body("Y", "O")
    a(f"s_mov_b32 s42, {segs[2][1][1]-1}")
    a("s_branch .f_oloop")
    a.label(".f_cO")
    first("O")
    a(f"s_mov_b32 s42, {NST[3]-1}")
    loop("O", ".f_oloop")
    a("s_cmp_eq_u32 s31, 2")
    a("s_cbranch_scc1 .f_oy")
    body("O", None)
    stamp(a, opt, 1, 1)
    a(f"s_mov_b32 s43, {4*4096}")
    send("O")
    stamp(a, opt, 1, 2)
    a("s_endpgm")
    a.label(".f_oy")
    body("O", "Y")
    a(f"s_mov_b32 s43, {3*4096}")
    send("O")
    a(f"s_mov_b32 s42, {segs[2][2][1]-1}")
    a("s_mov_b32 s63, 0")
    a("s_branch .f_yloop")
    a.label(".f_done")
    a("s_endpgm")
    return name, a.text(), kernel_desc(name, 256, 256), f"; @launch kernel={name} grid=(256,1,1) block=(512,1,1) lds=163840"


def build(opt):
    ks = [gen(opt)]
    if opt.get("probe"):
        import kernels2
        ks.append(kernels2.gen_probe(opt))
    out = HEADER
    for k in ks:
        out += k[3] + "\n"
    out += '.amdgcn_target "amdgcn-amd-amdhsa--gfx950"\n'
    for k in ks:
        out += k[1]
    out += '.section .rodata,"a"\n'
    for k in ks:
        out += k[2]
    return out


if __name__ == "__main__":
    import sys, json
    opt = json.loads(sys.argv[2]) if len(sys.argv) > 2 else {}
    open(sys.argv[1], "w").write(build(opt))
```
